```python
import torch

def _softmax(x, axis=-1):
    return torch.softmax(x, dim=axis)
def _gelu(x):
    return torch.nn.functional.gelu(x, approximate="tanh")
def _silu(x):
    return torch.nn.functional.silu(x)
def _sigmoid(x):
    return torch.sigmoid(x)
def _layernorm(x, axis=-1, eps=1e-5):
    m = x.mean(dim=axis, keepdim=True)
    v = x.var(dim=axis, keepdim=True, unbiased=False)
    return (x - m) / torch.sqrt(v + eps)
def _scatter_add(tgt, idx, src, axis=0):
    return tgt.clone().index_add_(axis, idx, src)
def _segment_sum(src, seg, n):
    out = torch.zeros((n,) + src.shape[1:], dtype=src.dtype)
    return out.index_add_(0, seg, src)
def _pad(x, pw):
    flat = tuple(v for pair in reversed(pw) for v in pair)
    return torch.nn.functional.pad(x, flat)

kernel_name = 'interleave_layers__sliding_block_cached__glu_gated_reglu__decode'

def setup_inputs():

    _w = (lambda a: (lambda t: t.to(torch.bfloat16) if t.is_floating_point() else t)(torch.as_tensor(a)))
    def _A_setup():
        B, Sq, D = 4, 1, 640
        Hq, Hkv, Sk, Dh = 32, 32, 4096, 128
        assert Hq % Hkv == 0, (Hq, Hkv)
        return {
            "x": _w((lambda *s: torch.randn(*s, dtype=torch.bfloat16) * 0.05)(B, Sq, D)),
            "k_cache": _w((lambda *s: torch.randn(*s, dtype=torch.bfloat16) * 0.8)(B, Hkv, Sk, Dh)),
            "v_cache": _w((lambda *s: torch.randn(*s, dtype=torch.bfloat16) * 0.8)(B, Hkv, Sk, Dh)),
            "wq": _w((lambda *s: torch.randn(*s, dtype=torch.bfloat16) * 0.8)(D, Hq * Dh) * (D ** -0.5)),
            "wo": _w((lambda *s: torch.randn(*s, dtype=torch.bfloat16) * 0.8)(Hq * Dh, D) * ((Hq * Dh) ** -0.5)),
        }
    _A_in = _A_setup()

    def _B_setup():
        B, S, D, F = 4, 1, 640, 1728
        return {
            "x": _w((lambda *s: torch.randn(*s, dtype=torch.bfloat16) * 0.05)(B, S, D)),
            "W_gate": _w((lambda *s: torch.randn(*s, dtype=torch.bfloat16) * 0.2)(D, F) * (2.0 / D) ** 0.5),
            "W_up": _w((lambda *s: torch.randn(*s, dtype=torch.bfloat16) * 0.2)(D, F) * (2.0 / D) ** 0.5),
            "W_down": _w((lambda *s: torch.randn(*s, dtype=torch.bfloat16) * 0.2)(F, D) * (1.0 / F) ** 0.5),
        }
    _B_in = _B_setup()

    return {
        "A_x": _A_in["x"],
        "A_k_cache": _A_in["k_cache"],
        "A_v_cache": _A_in["v_cache"],
        "A_wq": _A_in["wq"],
        "A_wo": _A_in["wo"],
        "B_x": _B_in["x"],
        "B_W_gate": _B_in["W_gate"],
        "B_W_up": _B_in["W_up"],
        "B_W_down": _B_in["W_down"],
    }

def reference(A_x, A_k_cache, A_v_cache, A_wq, A_wo, B_x, B_W_gate, B_W_up, B_W_down):
    def _A_ref(x, k_cache, v_cache, wq, wo):
        B, Sq, D = x.shape
        Hq, Dh = 32, 128
        Hkv, Sk = k_cache.shape[1], k_cache.shape[2]
        W = min(4096, max(256, Sk // 4))
        rep = Hq // Hkv
        q = (lambda x, *d: x.permute(*d))((x @ wq).reshape(B, Sq, Hq, Dh), 0, 2, 1, 3)
        k = (lambda x, n, axis: torch.repeat_interleave(x, n, dim=axis))(k_cache[:, :, Sk - W:, :], rep, axis=1)
        v = (lambda x, n, axis: torch.repeat_interleave(x, n, dim=axis))(v_cache[:, :, Sk - W:, :], rep, axis=1)
        scores = torch.einsum("bhqd,bhkd->bhqk", q, k) * (Dh ** -0.5)
        p = _softmax(scores, axis=-1)
        o = torch.einsum("bhqk,bhkd->bhqd", p, v)
        return (lambda x, *d: x.permute(*d))(o, 0, 2, 1, 3).reshape(B, Sq, Hq * Dh) @ wo

    def _B_ref(x, W_gate, W_up, W_down):
        gate = torch.einsum("bsd,df->bsf", x, W_gate)
        up = torch.einsum("bsd,df->bsf", x, W_up)
        gate = gate * (lambda x, dt: x.to(dt))(gate > 0, gate.dtype)
        h = gate * up
        return torch.einsum("bsf,fd->bsd", h, W_down)

    x = A_x
    x = x + _A_ref(_layernorm(x, axis=-1), A_k_cache, A_v_cache, A_wq, A_wo)
    x = x + _B_ref(_layernorm(x, axis=-1), B_W_gate, B_W_up, B_W_down)
    x = x + _A_ref(_layernorm(x, axis=-1), A_k_cache, A_v_cache, A_wq, A_wo)
    x = x + _B_ref(_layernorm(x, axis=-1), B_W_gate, B_W_up, B_W_down)
    return x
```

```python
import re

TRANS = ("v_exp_f32", "v_log_f32", "v_rcp_f32", "v_rsq_f32", "v_sqrt_f32", "v_sin_f32", "v_cos_f32")

def parse_reg(tok):
    tok = tok.strip()
    neg = tok.lstrip("-")
    m = re.fullmatch(r"(?:abs\()?\|?([vas])(\d+)\|?\)?", neg)
    if m: return {(m.group(1), int(m.group(2)))}
    m = re.fullmatch(r"([vas])\[(\d+):(\d+)\]", neg)
    if m: return {(m.group(1), i) for i in range(int(m.group(2)), int(m.group(3)) + 1)}
    if neg == "vcc": return {("s", "vcc_lo"), ("s", "vcc_hi")}
    if neg in ("vcc_lo", "vcc_hi", "m0", "exec_lo", "exec_hi"): return {("s", neg)}
    if neg == "exec": return {("s", "exec_lo"), ("s", "exec_hi")}
    return set()

class Ins:
    def __init__(self, text):
        self.text = text
        t = text.split(";")[0].strip()
        self.label = None; self.op = None
        self.rd = set(); self.wr = set()
        self.kind = "other"
        if t.endswith(":"):
            self.label = t[:-1]; self.kind = "label"; return
        if t.startswith(".") or not t:
            self.kind = "dir"; return
        parts = t.split(None, 1)
        op = parts[0]; self.op = op
        rest = parts[1] if len(parts) > 1 else ""
        ops = [o.strip() for o in re.split(r",(?![^\[]*\])", rest)] if rest else []
        mods = ""
        if ops:
            sp = ops[-1].split(None, 1)
            ops[-1] = sp[0]
            if len(sp) > 1: mods = sp[1]
        self.ops = ops; self.mods = mods
        R = [parse_reg(o) for o in ops]
        self.dpp = "_dpp" in op
        self.states = 1
        if op == "s_nop":
            self.kind = "nop"; self.states = int(ops[0], 0) + 1
        elif op.startswith("v_mfma") or op.startswith("v_smfmac"):
            self.kind = "mfma"; self.wr = R[0]
            self.ab = R[1] | R[2]
            if op.startswith("v_smfmac"):
                self.c = R[0]; self.ab |= R[3]
            else:
                self.c = R[3]
            self.rd = self.ab | self.c
        elif op.startswith("v_"):
            self.kind = "valu"
            base = op.replace("_e32", "").replace("_e64", "").replace("_dpp", "")
            self.trans = base in TRANS
            if "permlane" in op and "swap" in op:
                self.wr = R[0] | R[1]; self.rd = R[0] | R[1]
            else:
                self.wr = set(R[0])
                for r in R[1:]: self.rd |= r
                if base.startswith(("v_fmac", "v_dot2c", "v_writelane")) or self.dpp: self.rd |= R[0]
                if base.startswith(("v_add_co", "v_sub_co", "v_addc_co")): self.wr |= R[1]
                if base.startswith("v_cndmask") and len(ops) == 3: self.rd |= parse_reg("vcc")
                if base.startswith("v_cmpx"): self.wr |= parse_reg("exec")
        elif op.startswith(("buffer_", "global_")):
            self.kind = "vmem"
            self.lds = (" lds" in " " + mods) or "load_lds" in op
            self.store = "store" in op or "atomic" in op
            if self.store or self.lds:
                for r in R: self.rd |= r
                if self.store:
                    self.data = R[0] if op.startswith("buffer_") else R[1]
                if self.lds: self.rd |= {("s", "m0")}
            else:
                self.wr = R[0]
                for r in R[1:]: self.rd |= r
        elif op.startswith("ds_"):
            self.kind = "ds"
            if op.startswith("ds_read") or "bpermute" in op or "swizzle" in op:
                self.wr = R[0]
                for r in R[1:]: self.rd |= r
            else:
                for r in R: self.rd |= r
        elif op.startswith("s_"):
            self.kind = "salu"
            if op.startswith(("s_cmp", "s_cbranch", "s_branch", "s_waitcnt", "s_barrier", "s_endpgm", "s_sleep", "s_setprio", "s_bitcmp")):
                for r in R: self.rd |= r
            else:
                if R: self.wr = R[0]
                for r in R[1:]: self.rd |= r
                if op.startswith(("s_addk", "s_mulk")): self.rd |= R[0]
        else:
            raise ValueError("unknown instr " + text)

def vregs(s): return {r for r in s if r[0] in "va"}
def sregs(s): return {r for r in s if r[0] == "s"}

def need(p, c):
    n = 0
    if p.kind == "valu":
        w = vregs(p.wr); sw = sregs(p.wr)
        if c.kind == "valu":
            if c.dpp and (w & c.rd): n = max(n, 2)
            if "permlane" in c.op and (w & c.rd): n = max(n, 2)
            if c.op.startswith(("v_readlane", "v_readfirstlane")) and (w & c.rd): n = max(n, 1)
            if p.trans and not c.trans and (w & c.rd): n = max(n, 1)
            if p.trans and c.trans and (w & c.rd): n = max(n, 1)
            if p.op.startswith("v_dot") and (w & (c.rd | c.wr)) and c.op != p.op: n = max(n, 3)
            if sw & c.rd:
                n = max(n, 4 if c.op.startswith(("v_readlane", "v_writelane")) else 2)
            if ("s", "exec_lo") in sw: n = max(n, 5)
        if c.kind == "mfma":
            if w & c.rd: n = max(n, 2)
            if ("s", "exec_lo") in sw: n = max(n, 4)
        if c.kind == "vmem" and (sw & c.rd): n = max(n, 5)
    if p.kind == "mfma":
        d = p.wr
        if c.kind == "valu" and (d & (c.rd | c.wr)): n = max(n, 8)
        if c.kind in ("vmem", "ds") and (d & (c.rd | c.wr)): n = max(n, 8)
        if c.kind == "mfma":
            if d & c.ab: n = max(n, 8)
            if d & c.c and d != c.c: n = max(n, 6)
            if (d & c.wr) and not (d & c.c): n = max(n, 8)
        if c.kind == "valu" and (p.c & c.wr): n = max(n, 3)
    if p.kind == "salu" and ("s", "m0") in p.wr:
        if c.kind == "vmem" and c.lds: n = max(n, 1)
        if c.kind == "valu" and ("s", "m0") in c.rd: n = max(n, 1)
    if p.kind == "vmem" and p.store and len(p.data) >= 3:
        if c.kind == "valu" and (p.data & c.wr): n = max(n, 2)
        elif c.kind in ("vmem", "ds", "mfma") and (p.data & c.wr): n = max(n, 1)
    return n

class Asm:
    def __init__(self):
        self.L = []
    def __call__(self, text):
        for line in text.split("\n"):
            line = line.strip()
            if not line: continue
            ins = Ins(line)
            if ins.kind in ("label", "dir"):
                self.L.append(ins); continue
            pad = self.required(self.L, ins)
            if pad > 0:
                self.L.append(Ins(f"s_nop {pad-1}"))
            self.L.append(ins)
    @staticmethod
    def required(prev, ins):
        dist = 0; pad = 0
        for p in reversed(prev):
            if p.kind in ("label", "dir"): continue
            if p.op in ("s_branch", "s_endpgm"): break
            n = need(p, ins)
            if n - dist > pad: pad = n - dist
            dist += p.states
            if dist >= 10: break
        return pad
    def check_branches(self):
        labels = {i.label: k for k, i in enumerate(self.L) if i.kind == "label"}
        errs = []
        for k, i in enumerate(self.L):
            if i.op and (i.op.startswith("s_cbranch") or i.op == "s_branch"):
                tgt = labels[i.ops[0]]
                pre = [x for x in self.L[max(0, k - 24):k] if x.kind not in ("label", "dir")]
                for q in range(len(pre) - 1, -1, -1):
                    if pre[q].op in ("s_branch", "s_endpgm"): pre = pre[q + 1:]; break
                pre.append(Ins("s_nop 0"))
                cnt = 0
                for x in self.L[tgt:]:
                    if x.kind in ("label", "dir"): continue
                    if self.required(pre, x) > 0:
                        errs.append(f"hazard across branch {i.text} -> {x.text}")
                    pre.append(x); cnt += x.states
                    if cnt >= 10 or x.op in ("s_branch", "s_endpgm"): break
        return errs
    def text(self):
        out = []
        for i in self.L:
            out.append(i.text if i.kind in ("label", "dir") else "    " + i.text)
        return "\n".join(out) + "\n"
```

```python
import sys
from asmlib import Asm
NAME = "interleave_layers__sliding_block_cached__glu_gated_reglu__decode"

SZ_QG = 32 * 4 * 5 * 5 * 128
SZ_ST = 32 * 256
SZ_AS = 32 * 128
SZ_OD = 5 * 4 * 4096
SZ_A = 32 * 2048
SZ_H = 32 * 512
off = 0
def take(n):
    global off
    o = off; off += n; return o
MB_Q1 = take(SZ_QG); MB_G0 = take(SZ_QG); MB_G1 = take(SZ_QG)
MB_QS1 = take(SZ_ST); MB_GS0 = take(SZ_ST); MB_GS1 = take(SZ_ST)
MB_AS0 = take(SZ_AS); MB_AS1 = take(SZ_AS)
MB_O0 = take(SZ_OD); MB_O1 = take(SZ_OD); MB_D0 = take(SZ_OD); MB_D1 = take(SZ_OD)
Z1 = off
MB_A0 = take(SZ_A); MB_A1 = take(SZ_A); MB_H0 = take(SZ_H); MB_H1 = take(SZ_H)
Z2 = off
MB_Q0 = take(SZ_QG); MB_QS0 = take(SZ_ST)
MB_PROF = take(1024 * 256)
WS_USED = off
assert Z1 % 1024 == 0 and Z2 % 1024 == 0 and Z2 <= 2048 * 1024
S32 = 0xFFBFFFBF
S16 = 0xFFFFFFFF
OOB = 0x80000000
LIMIT = 1 << 20

RING = 0
XL = 131072
QL = XL + 1536
PL = QL + 256
ML = PL + 1024
LL = ML + 16
JUNK = LL + 16
OL = QL + 2048
RLO = OL + 2048
RLD = RLO + 4096
LDS_BYTES = RLD + 4096

pX, pK, pV, pWQ, pWO, pWG, pWU, pWD, pOUT, pDBG, pWS = 16, 18, 20, 22, 24, 28, 30, 32, 34, 36, 38
rK, rV, rWS, rT = 40, 44, 48, 52
(sW, sX, sHH, sSub, sH, sRole, sHasG, sOff, sRing, sInc, sFast, sCnt, sLayer, sT0, sT1, sT2, sT3,
 sMG, sMGS, sMA, sMAS, sMO, sMD, sMH, sS32, sXcc, sCB, sStamp, sM0, sC640, sEps, sKs) = range(56, 88)
sTime = 88
sAny = 90
def srd(r): return f"s[{r}:{r+3}]"
def sp(r): return f"s[{r}:{r+1}]"

vn = [1]
def valloc(n=1, align=1):
    while vn[0] % align: vn[0] += 1
    r = vn[0]; vn[0] += n; return r
vL = valloc(); vIdx = valloc(); vStampV = valloc()
vKV = 224; vRK = 228; vRV = 232
vTo = valloc(2); vRT = valloc(4)
vXG = valloc(); vXLw = valloc(); vXLr = valloc(); vPub = valloc(); vPubC = valloc(); vPubS = valloc()
vGA = valloc(); vGAS = valloc(); vGH = valloc(); vGHS = valloc(); vPubH = valloc()
vQLw = valloc(); vQLr = valloc(); vPLw = valloc(); vPLr = valloc(); vMLw = valloc(); vLLw = valloc(); vOLw = valloc(); vOLr = valloc()
vPubA = valloc(); vPubAS = valloc(); vCst = valloc()
vOA = vXG; vOS = vXLw; vDA = vXLr; vRLw = vPub; vRLr = vPubC; vPubO = vPubS
vXres = valloc(2, 2); vKf = valloc(); vMk = valloc(); vF = valloc(); vPs = valloc(); vXpk = valloc()
vT = valloc(16, 4)
vG = valloc(32, 4)
vA = valloc(8, 4)
vS = valloc(32, 4)
vO = valloc(32, 4)
vW = 160
assert vn[0] <= vW, vn[0]
WQ = vW; WG = vW + 32; WO = vW; WD = vW + 64
def v(r): return f"v{r}"
def vr(r, n): return f"v[{r}:{r+n-1}]"
def ar(r, n): return f"a[{r}:{r+n-1}]"
DPPALL = "row_mask:0xf bank_mask:0xf"

class Gen:
    def __init__(self, prof=False):
        self.a = Asm(); self.prof = prof
        self.vm = []
        self.cold = []
        self.uid = 0
    def I(self, t): self.a(t)
    def lab(self, p):
        self.uid += 1; return f"L_{p}_{self.uid}"
    def vmop(self, text, tag=None):
        self.I(text); self.vm.append(tag)
    def wait_for(self, tag):
        k = max(i for i, t in enumerate(self.vm) if t == tag)
        n = len(self.vm) - 1 - k
        self.I(f"s_waitcnt vmcnt({n})")
    def stamp(self):
        if not self.prof: return
        I = self.I
        I(f"s_memrealtime {sp(sTime)}"); I(f"s_mov_b32 s{sM0}, m0"); I(f"s_mov_b32 m0, s{sStamp}")
        I("s_waitcnt lgkmcnt(0)"); I(f"v_writelane_b32 {v(vStampV)}, s{sTime}, m0")
        I(f"s_mov_b32 m0, s{sM0}"); I(f"s_add_u32 s{sStamp}, s{sStamp}, 1")
    def pub_local(self, stores):
        slow = self.lab("slow"); done = self.lab("pubd")
        self.I(f"s_cmp_eq_u32 s{sFast}, 0"); self.I(f"s_cbranch_scc1 {slow}")
        for s in stores: self.I(s)
        self.I(f"{done}:")
        self.cold.append([f"{slow}:"] + [s + " sc1" for s in stores] + [f"s_branch {done}"])
    def retry(self, name, again, ok, raws, lo_only=False):
        c = [f"{name}:", f"s_add_u32 s{sCnt}, s{sCnt}, 1", f"s_and_b32 s{sT0}, s{sCnt}, 255", f"s_cbranch_scc1 {again}",
             f"s_cmp_ge_u32 s{sCnt}, {LIMIT}", f"s_cbranch_scc1 {ok}"]
        if raws is None:
            c += [f"s_branch {again}"]
        else:
            for r in raws:
                c += [f"v_cmp_eq_u32 vcc, s{sS32}, {v(r)}", f"s_cbranch_vccnz {again}"]
            c += [f"s_branch {ok}"]
        self.cold.append(c)

    def dma(self, voff, rs, tag, inc):
        self.vmop(f"buffer_load_dwordx4 {v(voff)}, {srd(rs)}, s{sOff} offen nt lds", tag)
        self.I("s_addk_i32 m0, 1024")
        if isinstance(inc, int): self.I(f"s_addk_i32 s{sOff}, {inc}") if inc < 32768 else self.I(f"s_add_u32 s{sOff}, s{sOff}, {inc}")
        else: self.I(f"s_add_u32 s{sOff}, s{sOff}, {inc}")
    def item(self, i):
        if i in (0, 32):
            self.I(f"s_mov_b32 m0, s{sRing}"); self.I(f"s_lshl_b32 s{sOff}, s{sW}, 10")
        if i == 64:
            self.I(f"s_mov_b32 m0, s{sRing}"); self.I(f"s_mov_b32 s{sOff}, 0")
        if i < 32: self.dma(vKV + (i & 3), rK, i, 4096)
        elif i < 64:
            j = i - 32; self.dma(vKV + (j & 1) + 2 * ((j >> 2) & 1), rV, i, 4096)
        else: self.dma(vTo + (i & 1), rT, i, f"s{sInc}")
    def k_read(self, t):
        for s in range(4):
            self.I(f"ds_read_b128 {ar(16*t+4*s,4)}, {v(vRK+s)} offset:{t*4096}")
    def v_read(self, s):
        for e in range(8):
            for rd in range(2):
                self.I(f"ds_read_b64_tr_b16 {ar(128+16*e+4*s+2*rd,2)}, {v(vRV+2*e+rd)} offset:{s*8192}")

    def xg(self, smb):
        I = self.I
        poll = self.lab("xg"); rt = self.lab("xgr"); ok = self.lab("xgk")
        I(f"{poll}:")
        for u in range(4):
            I(f"buffer_load_dwordx4 {vr(vG+4*u,4)}, {v(vXG)}, {srd(rWS)}, s{smb} offen offset:{u*1024} sc1")
        I("s_waitcnt vmcnt(2)")
        I(f"v_pk_add_f32 {vr(vT,2)}, {vr(vG,2)}, {vr(vG+4,2)}")
        I(f"v_pk_add_f32 {vr(vT+2,2)}, {vr(vG+2,2)}, {vr(vG+6,2)}")
        I("s_waitcnt vmcnt(1)")
        I(f"v_pk_add_f32 {vr(vT,2)}, {vr(vT,2)}, {vr(vG+8,2)}")
        I(f"v_pk_add_f32 {vr(vT+2,2)}, {vr(vT+2,2)}, {vr(vG+10,2)}")
        I("s_waitcnt vmcnt(0)")
        I(f"v_pk_add_f32 {vr(vT,2)}, {vr(vT,2)}, {vr(vG+12,2)}")
        I(f"v_pk_add_f32 {vr(vT+2,2)}, {vr(vT+2,2)}, {vr(vG+14,2)}")
        I(f"v_permlane32_swap_b32 {v(vT)}, {v(vT+2)}")
        I(f"v_permlane32_swap_b32 {v(vT+1)}, {v(vT+3)}")
        I(f"v_pk_add_f32 {vr(vT,2)}, {vr(vT,2)}, {vr(vT+2,2)}")
        I(f"v_pk_add_f32 {vr(vT,2)}, {vr(vT,2)}, {vr(vXres,2)}")
        I(f"v_cmp_u_f32 vcc, {v(vT)}, {v(vT+1)}")
        I(f"v_cvt_pk_bf16_f32 {v(vXpk)}, {v(vT)}, {v(vT+1)}")
        I(f"s_cbranch_vccnz {rt}")
        I(f"{ok}:")
        self.retry(rt, poll, ok, list(range(vG, vG + 16)))
    def x_unpack(self):
        self.I(f"v_lshlrev_b32 {v(vXres)}, 16, {v(vXpk)}")
        self.I(f"v_and_b32 {v(vXres+1)}, 0xffff0000, {v(vXpk)}")
    def zero(self, regs):
        for r in regs: self.I(f"v_mov_b32 {v(r)}, 0")
    def gemv(self, W, smb, smbs, force_sc1=False, pre_barrier=None, post_barrier=None):
        I = self.I
        I(f"ds_write_b32 {v(vXLw)}, {v(vXpk)}")
        self.x_unpack()
        t0, t1 = vT + 4, vT + 5
        I(f"v_add_f32 {v(t0)}, {v(vXres)}, {v(vXres+1)}")
        I(f"v_mul_f32 {v(t1)}, {v(vXres)}, {v(vXres)}")
        I(f"v_fmac_f32 {v(t1)}, {v(vXres+1)}, {v(vXres+1)}")
        if pre_barrier: pre_barrier()
        I("s_waitcnt lgkmcnt(0)"); I("s_barrier")
        if post_barrier: post_barrier()
        I(f"ds_read_b128 {vr(vA,4)}, {v(vXLr)}")
        I(f"ds_read_b128 {vr(vA+4,4)}, {v(vXLr)} offset:128")
        I(f"v_permlane32_swap_b32 {v(t0)}, {v(t1)}")
        I(f"v_add_f32 {v(t0)}, {v(t0)}, {v(t1)}")
        for k in (8, 4, 2, 1):
            I(f"v_add_f32_dpp {v(t0)}, {v(t0)}, {v(t0)} row_ror:{k} {DPPALL}")
        I("s_waitcnt lgkmcnt(1)")
        I(f"v_smfmac_f32_16x16x64_bf16 {vr(vS,4)}, {vr(vA,4)}, {vr(W,8)}, {v(vIdx)}")
        I(f"v_smfmac_f32_16x16x64_bf16 {vr(vS+4,4)}, {vr(vA,4)}, {vr(W+16,8)}, {v(vIdx)}")
        I("s_waitcnt lgkmcnt(0)")
        I(f"v_smfmac_f32_16x16x64_bf16 {vr(vS,4)}, {vr(vA+4,4)}, {vr(W+8,8)}, {v(vIdx)}")
        I(f"v_smfmac_f32_16x16x64_bf16 {vr(vS+4,4)}, {vr(vA+4,4)}, {vr(W+24,8)}, {v(vIdx)}")
        I(f"v_add_f32_dpp {v(t0)}, {v(t0)}, {v(t0)} row_bcast:15 row_mask:0xa bank_mask:0xf")
        st_s = f"buffer_store_dword {v(t0)}, {v(vPubS)}, {srd(rWS)}, s{smbs} offen"
        st_d = f"buffer_store_dwordx2 {vr(vT,2)}, {v(vPub)}, {srd(rWS)}, s{smb} offen"
        st_c = f"buffer_store_dwordx2 {vr(vT+2,2)}, {v(vPubC)}, {srd(rWS)}, s{smb} offen"
        I(f"v_add_f32 {v(vT)}, {v(vS)}, {v(vS+1)}")
        I(f"v_add_f32 {v(vT+2)}, {v(vS+2)}, {v(vS+3)}")
        I(f"v_add_f32 {v(vT+1)}, {v(vS+4)}, {v(vS+5)}")
        I(f"v_add_f32 {v(vT+3)}, {v(vS+6)}, {v(vS+7)}")
        if force_sc1:
            for s in (st_d, st_c, st_s): I(s + " sc1")
        else:
            self.pub_local([st_d, st_c, st_s])

    def g5_issue(self, vdat, vst, smb, smbs, data=True, tag=None):
        if data:
            for p in range(5):
                self.I(f"buffer_load_dwordx4 {vr(vG+4*p,4)}, {v(vdat)}, {srd(rWS)}, s{smb} offen offset:{p*128} sc1")
        self.I(f"buffer_load_dwordx4 {vr(vG+20,4)}, {v(vst)}, {srd(rWS)}, s{smbs} offen sc1")
        self.I(f"buffer_load_dwordx4 {vr(vG+24,4)}, {v(vst)}, {srd(rWS)}, s{smbs} offen offset:16 sc1")
        self.I(f"buffer_load_dwordx2 {vr(vG+28,2)}, {v(vst)}, {srd(rWS)}, s{smbs} offen offset:32 sc1")
    def g5_stats(self):
        I = self.I
        I(f"v_pk_add_f32 {vr(vT+8,2)}, {vr(vG+20,2)}, {vr(vG+22,2)}")
        I(f"v_pk_add_f32 {vr(vT+10,2)}, {vr(vG+24,2)}, {vr(vG+26,2)}")
        I(f"v_pk_add_f32 {vr(vT+8,2)}, {vr(vT+8,2)}, {vr(vG+28,2)}")
        I(f"v_pk_add_f32 {vr(vT+8,2)}, {vr(vT+8,2)}, {vr(vT+10,2)}")
        I(f"v_mul_f32 {v(vT+8)}, -s{sC640}, {v(vT+8)}")
        I(f"v_mul_f32 {v(vT+9)}, s{sC640}, {v(vT+9)}")
    def g5_var(self):
        I = self.I
        I(f"v_fma_f32 {v(vT+10)}, -{v(vT+8)}, {v(vT+8)}, {v(vT+9)}")
        I(f"v_max_f32 {v(vT+10)}, 0, {v(vT+10)}")
        I(f"v_add_f32 {v(vT+10)}, s{sEps}, {v(vT+10)}")
    def g5_data(self):
        I = self.I
        I(f"v_pk_add_f32 {vr(vT,2)}, {vr(vG,2)}, {vr(vG+4,2)}")
        I(f"v_pk_add_f32 {vr(vT+2,2)}, {vr(vG+2,2)}, {vr(vG+6,2)}")
        I(f"v_pk_add_f32 {vr(vT+4,2)}, {vr(vG+8,2)}, {vr(vG+12,2)}")
        I(f"v_pk_add_f32 {vr(vT+6,2)}, {vr(vG+10,2)}, {vr(vG+14,2)}")
        I(f"v_pk_add_f32 {vr(vT,2)}, {vr(vT,2)}, {vr(vG+16,2)}")
        I(f"v_pk_add_f32 {vr(vT+2,2)}, {vr(vT+2,2)}, {vr(vG+18,2)}")
        I(f"v_pk_add_f32 {vr(vT,2)}, {vr(vT,2)}, {vr(vT+4,2)}")
        I(f"v_pk_add_f32 {vr(vT+2,2)}, {vr(vT+2,2)}, {vr(vT+6,2)}")
        self.g5_stats()
        for k in range(4):
            I(f"v_permlane32_swap_b32 {v(vT+k)}, {v(vT+4+k)}")
        for k in range(4):
            I(f"v_fmac_f32 {v(vT+k)}, {v(vT+8)}, {v(vT+4+k)}")
        I(f"v_pk_add_f32 {vr(vT+4,2)}, {vr(vT,2)}, {vr(vT+2,2)}")
        I(f"v_add_f32 {v(vT+4)}, {v(vT+4)}, {v(vT+9)}")
        I(f"v_cmp_u_f32 vcc, {v(vT+4)}, {v(vT+5)}")

    def a_input(self, smb, smbs, preissued):
        I = self.I
        oth = self.lab("ai_o"); join = self.lab("ai_j")
        p0, c0, r0, k0 = (self.lab(x) for x in ("ai_p", "ai_c", "ai_r", "ai_k"))
        p1, c1, r1, k1 = (self.lab(x) for x in ("ai_p", "ai_c", "ai_r", "ai_k"))
        I(f"s_cmp_lg_u32 s{sW}, 0"); I(f"s_cbranch_scc1 {oth}")
        if preissued: I(f"s_branch {c0}")
        I(f"{p0}:")
        self.g5_issue(vGA, vGAS, smb, smbs)
        I("s_waitcnt vmcnt(0)")
        I(f"{c0}:")
        self.g5_data()
        I(f"v_cvt_pk_bf16_f32 {v(vT+6)}, {v(vT)}, {v(vT+2)}")
        I(f"v_cvt_pk_bf16_f32 {v(vT+7)}, {v(vT+1)}, {v(vT+3)}")
        I("s_cmp_lg_u32 vcc_lo, 0"); I(f"s_cbranch_scc1 {r0}")
        I(f"{k0}:")
        I(f"ds_write2_b32 {v(vQLw)}, {v(vT+6)}, {v(vT+7)} offset0:0 offset1:8")
        I(f"{join}:")
        self.g5_var()
        I("s_waitcnt lgkmcnt(0)"); I("s_barrier")
        self.retry(r0, p0, k0, list(range(vG, vG + 30)))
        sub = Gen(); sub.uid = self.uid + 1000; sub.prof = False
        c = [f"{oth}:"]
        if preissued: c.append(f"s_branch {c1}")
        c.append(f"{p1}:")
        sub.g5_issue(vGA, vGAS, smb, smbs, data=False); c += [i.text for i in sub.a.L]; sub.a.L = []
        c += ["s_waitcnt vmcnt(0)", f"{c1}:"]
        sub.g5_stats(); c += [i.text for i in sub.a.L]
        c += [f"v_cmp_u_f32 vcc, {v(vT+8)}, {v(vT+9)}", f"s_cbranch_vccnz {r1}", f"{k1}:", f"s_branch {join}"]
        self.cold.append(c)
        self.retry(r1, p1, k1, list(range(vG + 20, vG + 30)))

    def qk_softmax(self):
        I = self.I
        I(f"ds_read_b128 {vr(vA,4)}, {v(vQLr)}")
        I(f"ds_read_b128 {vr(vA+4,4)}, {v(vQLr)} offset:128")
        I(f"v_rsq_f32 {v(vKf)}, {v(vT+10)}")
        I(f"v_mul_f32 {v(vKf)}, s{sKs}, {v(vKf)}")
        I("s_waitcnt lgkmcnt(0)")
        F = lambda t: vS + 4 * t
        m = vT
        def add(t): I(f"v_add_f32 {v(F(t))}, {v(F(t))}, {v(F(t)+1)}")
        for t in range(8):
            I(f"v_smfmac_f32_16x16x64_bf16 {vr(F(t),4)}, {vr(vA,4)}, {ar(16*t,8)}, {v(vIdx)}")
            I(f"v_smfmac_f32_16x16x64_bf16 {vr(F(t),4)}, {vr(vA+4,4)}, {ar(16*t+8,8)}, {v(vIdx)}")
            if t >= 4: add(t - 4)
        I(f"v_max3_f32 {v(m)}, {v(F(0))}, {v(F(1))}, {v(F(2))}")
        add(4); add(5)
        I(f"v_max3_f32 {v(m)}, {v(m)}, {v(F(3))}, {v(F(4))}")
        add(6)
        I(f"v_max3_f32 {v(m)}, {v(m)}, {v(F(5))}, {v(F(6))}")
        add(7)
        I(f"v_max_f32 {v(m)}, {v(m)}, {v(F(7))}")
        mv = [(0, 2, 2), (1, 3, 2), (0, 4, 4), (1, 5, 4), (0, 6, 8), (1, 7, 8)]
        for q, k in enumerate((8, 4, 2, 1)):
            for (d, s_, msk) in mv[2 * q:2 * q + 2]:
                I(f"v_mov_b32_dpp {v(F(d))}, {v(F(s_))} quad_perm:[0,1,2,3] row_mask:{msk:#x} bank_mask:0xf")
            I(f"v_max_f32_dpp {v(m)}, {v(m)}, {v(m)} row_ror:{k} {DPPALL}")
        I(f"v_mul_f32 {v(vMk)}, {v(m)}, {v(vKf)}")
        I(f"v_fma_f32 {v(vT+1)}, {v(F(0))}, {v(vKf)}, -{v(vMk)}")
        I(f"v_fma_f32 {v(vT+2)}, {v(F(1))}, {v(vKf)}, -{v(vMk)}")
        I(f"v_exp_f32 {v(vT+1)}, {v(vT+1)}")
        I(f"v_exp_f32 {v(vT+2)}, {v(vT+2)}")
        I(f"ds_write_b32 {v(vMLw)}, {v(vMk)}")
        I(f"v_cvt_pk_bf16_f32 {v(vT+3)}, {v(vT+1)}, {v(vT+2)}")
        I(f"ds_write_b32 {v(vPLw)}, {v(vT+3)}")
        I(f"ds_read_b128 {vr(vA,4)}, {v(vPLr)}")
        I(f"ds_read_b128 {vr(vA+4,4)}, {v(vPLr)} offset:128")
        I(f"v_add_f32 {v(vPs)}, {v(vT+1)}, {v(vT+2)}")
        for k in (8, 4, 2, 1):
            I(f"v_add_f32_dpp {v(vPs)}, {v(vPs)}, {v(vPs)} row_ror:{k} {DPPALL}")
    def factor_ops(self):
        g = []
        g.append(["s_barrier", f"ds_read_b128 {vr(vT+4,4)}, {v(vCst)} offset:{ML-XL}"])
        g.append([f"v_add_f32_dpp {v(vPs)}, {v(vPs)}, {v(vPs)} row_bcast:15 row_mask:0xa bank_mask:0xf"])
        g.append([f"v_add_f32_dpp {v(vPs)}, {v(vPs)}, {v(vPs)} row_bcast:31 row_mask:0xc bank_mask:0xf"])
        g.append(["s_waitcnt lgkmcnt(0)", f"v_max3_f32 {v(vT+4)}, {v(vT+4)}, {v(vT+5)}, {v(vT+6)}"])
        g.append([f"v_max_f32 {v(vT+4)}, {v(vT+4)}, {v(vT+7)}"])
        g.append([f"v_sub_f32 {v(vF)}, {v(vMk)}, {v(vT+4)}", f"v_mov_b32 {v(vMk)}, {v(vT+4)}"])
        g.append([f"v_exp_f32 {v(vF)}, {v(vF)}"])
        g.append([f"v_mul_f32 {v(vPs)}, {v(vPs)}, {v(vF)}", f"ds_write_b32 {v(vLLw)}, {v(vPs)}"])
        return g
    def pv(self, e, sg):
        self.I(f"v_smfmac_f32_16x16x64_bf16 {vr(vO+4*e,4)}, {vr(vA+4*sg,4)}, {ar(128+16*e+8*sg,8)}, {v(vIdx)}")
    def o_compact(self, e):
        self.I(f"v_add_f32_dpp {v(vT+8+(e>>2))}, {v(vO+4*e)}, {v(vO+4*e+1)} quad_perm:[0,1,2,3] row_mask:{1<<(e&3):#x} bank_mask:0xf")
    def a_end(self):
        I = self.I
        I(f"v_mul_f32 {v(vT+8)}, {v(vT+8)}, {v(vF)}")
        I(f"v_mul_f32 {v(vT+9)}, {v(vT+9)}, {v(vF)}")
        I(f"ds_write2_b32 {v(vOLw)}, {v(vT+8)}, {v(vT+9)} offset0:0 offset1:64")
        w1 = self.lab("ae1"); done = self.lab("aed")
        I(f"s_cmp_lg_u32 s{sW}, 0")
        I("s_waitcnt lgkmcnt(0)"); I("s_barrier")
        I(f"s_cbranch_scc1 {w1}")
        for w in range(4):
            I(f"ds_read_b64 {vr(vT+2*w,2)}, {v(vOLr)} offset:{w*512}")
        I("s_waitcnt lgkmcnt(2)")
        I(f"v_pk_add_f32 {vr(vT,2)}, {vr(vT,2)}, {vr(vT+2,2)}")
        I("s_waitcnt lgkmcnt(0)")
        I(f"v_pk_add_f32 {vr(vT+4,2)}, {vr(vT+4,2)}, {vr(vT+6,2)}")
        I(f"v_pk_add_f32 {vr(vT,2)}, {vr(vT,2)}, {vr(vT+4,2)}")
        I(f"v_cvt_pk_bf16_f32 {v(vT)}, {v(vT)}, {v(vT+1)}")
        I(f"v_min_u32 {v(vT)}, -2, {v(vT)}")
        self.pub_local([f"buffer_store_dword {v(vT)}, {v(vPubA)}, {srd(rWS)}, s{sMA} offen"])
        I(f"s_branch {done}")
        I(f"{w1}:")
        I(f"s_cmp_lg_u32 s{sW}, 1"); I(f"s_cbranch_scc1 {done}")
        I(f"ds_read_b128 {vr(vT+4,4)}, {v(vCst)} offset:{LL-XL}")
        I(f"v_mov_b32 {v(vT)}, {v(vMk)}")
        I("s_waitcnt lgkmcnt(0)")
        I(f"v_pk_add_f32 {vr(vT+4,2)}, {vr(vT+4,2)}, {vr(vT+6,2)}")
        I(f"v_add_f32 {v(vT+1)}, {v(vT+4)}, {v(vT+5)}")
        self.pub_local([f"buffer_store_dwordx2 {vr(vT,2)}, {v(vPubAS)}, {srd(rWS)}, s{sMAS} offen"])
        I(f"{done}:")

    def od_finish(self, rl, smb):
        I = self.I
        done = self.lab("odf")
        I(f"s_cmp_lg_u32 s{sW}, 0")
        I("s_waitcnt lgkmcnt(0)"); I("s_barrier")
        I(f"s_cbranch_scc1 {done}")
        for w in range(4):
            I(f"ds_read_b128 {vr(vT+4*w,4)}, {v(vRLr)} offset:{rl-RLO+w*1024}")
        I("s_waitcnt lgkmcnt(2)")
        I(f"v_pk_add_f32 {vr(vT,2)}, {vr(vT,2)}, {vr(vT+4,2)}")
        I(f"v_pk_add_f32 {vr(vT+2,2)}, {vr(vT+2,2)}, {vr(vT+6,2)}")
        I("s_waitcnt lgkmcnt(0)")
        I(f"v_pk_add_f32 {vr(vT+8,2)}, {vr(vT+8,2)}, {vr(vT+12,2)}")
        I(f"v_pk_add_f32 {vr(vT+10,2)}, {vr(vT+10,2)}, {vr(vT+14,2)}")
        I(f"v_pk_add_f32 {vr(vT,2)}, {vr(vT,2)}, {vr(vT+8,2)}")
        I(f"v_pk_add_f32 {vr(vT+2,2)}, {vr(vT+2,2)}, {vr(vT+10,2)}")
        I(f"buffer_store_dwordx4 {vr(vT,4)}, {v(vPubO)}, {srd(rWS)}, s{smb} offen sc1")
        I(f"{done}:")

    def o_stage(self):
        I = self.I
        poll = self.lab("o"); rt = self.lab("or"); ok = self.lab("ok")
        self.zero(range(vS, vS + 16))
        I(f"{poll}:")
        I(f"buffer_load_dwordx4 {vr(vA,4)}, {v(vOA)}, {srd(rWS)}, s{sMA} offen sc1")
        I(f"buffer_load_dwordx4 {vr(vA+4,4)}, {v(vOA)}, {srd(rWS)}, s{sMA} offen offset:128 sc1")
        I(f"buffer_load_dwordx4 {vr(vG,4)}, {v(vOS)}, {srd(rWS)}, s{sMAS} offen sc1")
        I("s_waitcnt vmcnt(2)")
        I(f"v_max3_u32 {v(vT)}, {v(vA)}, {v(vA+1)}, {v(vA+2)}")
        I("s_waitcnt vmcnt(1)")
        I(f"v_max3_u32 {v(vT)}, {v(vT)}, {v(vA+3)}, {v(vA+4)}")
        I(f"v_max3_u32 {v(vT+1)}, {v(vA+5)}, {v(vA+6)}, {v(vA+7)}")
        I(f"v_max_u32 {v(vT)}, {v(vT)}, {v(vT+1)}")
        I(f"v_cmp_eq_u32 {sp(sAny)}, -1, {v(vT)}")
        I("s_waitcnt vmcnt(0)")
        for k in range(4):
            I(f"v_cmp_eq_u32 vcc, s{sS32}, {v(vG+k)}")
            I(f"s_or_b64 {sp(sAny)}, {sp(sAny)}, vcc")
        I(f"s_cbranch_scc1 {rt}")
        I(f"{ok}:")
        self.retry(rt, poll, ok, None)
        M0_, L0, M1_, L1 = vG, vG + 1, vG + 2, vG + 3
        w0, w1, mx = vT + 8, vT + 9, vT + 10
        side = [[f"v_max_f32 {v(mx)}, {v(M0_)}, {v(M1_)}"],
                [f"v_sub_f32 {v(w0)}, {v(M0_)}, {v(mx)}", f"v_sub_f32 {v(w1)}, {v(M1_)}, {v(mx)}"],
                [f"v_exp_f32 {v(w0)}, {v(w0)}"], [f"v_exp_f32 {v(w1)}, {v(w1)}"],
                [f"v_mul_f32 {v(mx)}, {v(L0)}, {v(w0)}", f"v_fmac_f32 {v(mx)}, {v(L1)}, {v(w1)}"],
                [f"v_rcp_f32 {v(mx)}, {v(mx)}"], [],
                [f"v_mul_f32 {v(w0)}, {v(w0)}, {v(mx)}", f"v_mul_f32 {v(w1)}, {v(w1)}, {v(mx)}"]]
        k = 0
        for t in range(4):
            for sg in range(2):
                I(f"v_smfmac_f32_16x16x64_bf16 {vr(vS+4*t,4)}, {vr(vA+4*sg,4)}, {vr(WO+16*t+8*sg,8)}, {v(vIdx)}")
                for x in side[k]: I(x)
                k += 1
        for t in range(4):
            a = vS + 4 * t
            I(f"v_add_f32 {v(a)}, {v(a)}, {v(a+1)}")
            I(f"v_add_f32 {v(a+2)}, {v(a+2)}, {v(a+3)}")
            I(f"v_mul_f32 {v(a)}, {v(a)}, {v(w0)}")
            I(f"v_fmac_f32 {v(a)}, {v(a+2)}, {v(w1)}")
            I(f"ds_write_b32 {v(vRLw)}, {v(a)} offset:{t*64}")
        self.od_finish(RLO, sMO)

    def d_stage(self):
        I = self.I
        poll = self.lab("d"); rt = self.lab("dr"); ok = self.lab("dk"); skip = self.lab("ds")
        self.zero(range(vS, vS + 16))
        I(f"s_cmp_eq_u32 s{sHasG}, 0"); I(f"s_cbranch_scc1 {skip}")
        I(f"{poll}:")
        I(f"buffer_load_dwordx4 {vr(vA,4)}, {v(vDA)}, {srd(rWS)}, s{sMH} offen sc1")
        I("s_waitcnt vmcnt(0)")
        I(f"v_max3_u32 {v(vT)}, {v(vA)}, {v(vA+1)}, {v(vA+2)}")
        I(f"v_max_u32 {v(vT)}, {v(vT)}, {v(vA+3)}")
        I(f"v_cmp_eq_u32 vcc, -1, {v(vT)}")
        I(f"s_cbranch_vccnz {rt}")
        I(f"{ok}:")
        self.retry(rt, poll, ok, None)
        for t in range(4):
            I(f"v_smfmac_f32_16x16x64_bf16 {vr(vS+4*t,4)}, {vr(vA,4)}, {vr(WD+8*t,8)}, {v(vIdx)}")
        I(f"{skip}:")
        for t in range(4):
            a = vS + 4 * t
            I(f"v_add_f32 {v(a)}, {v(a)}, {v(a+1)}")
            I(f"ds_write_b32 {v(vRLw)}, {v(a)} offset:{RLD-RLO+t*64}")
        self.od_finish(RLD, sMD)

    def h_stage(self):
        I = self.I
        poll = self.lab("h"); rt = self.lab("hr"); ok = self.lab("hk")
        I(f"{poll}:")
        self.g5_issue(vGH, vGHS, sMG, sMGS)
        I("s_waitcnt vmcnt(0)")
        self.g5_data()
        self.g5_var()
        I("s_cmp_lg_u32 vcc_lo, 0"); I(f"s_cbranch_scc1 {rt}")
        I(f"{ok}:")
        self.retry(rt, poll, ok, list(range(vG, vG + 30)))
        I(f"v_rcp_f32 {v(vT+10)}, {v(vT+10)}")
        I(f"v_max_f32 {v(vT)}, 0, {v(vT)}")
        I(f"v_max_f32 {v(vT+2)}, 0, {v(vT+2)}")
        I(f"v_mul_f32 {v(vT+1)}, {v(vT+1)}, {v(vT+10)}")
        I(f"v_mul_f32 {v(vT+3)}, {v(vT+3)}, {v(vT+10)}")
        I(f"v_mul_f32 {v(vT)}, {v(vT)}, {v(vT+1)}")
        I(f"v_mul_f32 {v(vT+2)}, {v(vT+2)}, {v(vT+3)}")
        I(f"v_cvt_pk_bf16_f32 {v(vT)}, {v(vT)}, {v(vT+2)}")
        I(f"v_min_u32 {v(vT)}, -2, {v(vT)}")
        self.pub_local([f"buffer_store_dword {v(vT)}, {v(vPubH)}, {srd(rWS)}, s{sMH} offen"])

    def make_srd(self, r, ptr, off_s, nrec):
        I = self.I
        I(f"s_add_u32 s{r}, s{ptr}, s{off_s}"); I(f"s_addc_u32 s{r+1}, s{ptr+1}, 0")
        I(f"s_mov_b32 s{r+2}, {nrec}"); I(f"s_mov_b32 s{r+3}, 0x20000")

    def build(self):
        I = self.I
        t0, t1, t2, t3, t4, t5, t6, t7 = range(vT, vT + 8)
        I(f"{NAME}_kernel:")
        I("s_cmp_ge_u32 s2, 256"); I("s_cbranch_scc1 L_end")
        I("s_load_dwordx16 s[16:31], s[0:1], 0"); I("s_load_dwordx8 s[32:39], s[0:1], 64")
        I(f"v_lshrrev_b32 {v(t0)}, 6, v0"); I(f"v_and_b32 {v(vL)}, 63, v0")
        I(f"s_and_b32 s{sX}, s2, 7"); I(f"v_readfirstlane_b32 s{sW}, {v(t0)}")
        I(f"s_lshr_b32 s{sHH}, s2, 6"); I(f"s_bfe_u32 s{sSub}, s2, 0x30003")
        I(f"s_lshl_b32 s{sH}, s{sX}, 2"); I(f"s_add_u32 s{sH}, s{sH}, s{sHH}")
        I(f"s_lshl_b32 s{sRing}, s{sW}, 15")
        I(f"s_mov_b32 s{sStamp}, 0"); I(f"v_mov_b32 {v(vStampV)}, 0")
        I(f"s_lshr_b32 s{sT0}, s{sSub}, 1"); I(f"s_lshl_b32 s{sT0}, s{sT0}, 5"); I(f"s_add_u32 s{sT0}, s{sT0}, s{sH}")
        I(f"s_lshl_b32 s{sT0}, s{sT0}, 20"); I(f"s_and_b32 s{sT1}, s{sSub}, 1"); I(f"s_lshl_b32 s{sT1}, s{sT1}, 17")
        I(f"s_add_u32 s{sT0}, s{sT0}, s{sT1}"); I(f"s_add_u32 s{sT0}, s{sT0}, 786432")
        I(f"v_and_b32 {v(t1)}, 15, {v(vL)}"); I(f"v_lshrrev_b32 {v(t2)}, 4, {v(vL)}")
        I(f"v_and_b32 {v(t3)}, 1, {v(t2)}"); I(f"v_lshrrev_b32 {v(t4)}, 1, {v(t2)}"); I(f"v_lshl_or_b32 {v(t3)}, {v(t3)}, 1, {v(t4)}")
        I(f"v_xor_b32 {v(t3)}, {v(t3)}, {v(t1)}"); I(f"v_lshlrev_b32 {v(t3)}, 4, {v(t3)}")
        I(f"v_lshl_or_b32 {v(vKV)}, {v(t2)}, 8, {v(t3)}")
        for k in (1, 2, 3): I(f"v_xor_b32 {v(vKV+k)}, {64*k}, {v(vKV)}")
        I(f"v_lshlrev_b32 {v(t3)}, 1, {v(t2)}"); I(f"v_xor_b32 {v(t3)}, {v(t3)}, {v(t1)}"); I(f"v_lshlrev_b32 {v(t3)}, 4, {v(t3)}")
        I(f"v_lshl_or_b32 {v(vTo)}, {v(t2)}, 13, {v(t3)}"); I(f"v_xor_b32 {v(vTo+1)}, 128, {v(vTo)}")
        I(f"s_lshl_b32 s{sT1}, s{sSub}, 20"); I(f"s_lshl_b32 s{sT2}, s{sH}, 8"); I(f"s_add_u32 s{sT1}, s{sT1}, s{sT2}")
        I(f"s_mov_b32 s{sS32}, {S32:#x}")
        I(f"s_add_u32 m0, s{sRing}, {24*1024}"); I(f"s_lshl_b32 s{sOff}, s{sW}, 18")
        I(f"s_cmp_lt_u32 s{sSub}, 5"); I(f"s_cselect_b32 s{sRole}, 0, 1")
        I("s_waitcnt lgkmcnt(0)")
        self.stamp()
        self.make_srd(rK, pK, sT0, 131072)
        I(f"s_cmp_lg_u32 s{sRole}, 0"); I("s_cbranch_scc1 L_noq")
        self.make_srd(rT, pWQ, sT1, 127 * 8192 + 256)
        for ii in range(8):
            self.dma(vTo + ((ii >> 1) & 1), rT, None, 32768)
        I(f"v_and_b32 {v(t3)}, 31, {v(vL)}"); I(f"v_lshrrev_b32 {v(t4)}, 5, {v(vL)}")
        I(f"v_lshlrev_b32 {v(t3)}, 3, {v(t3)}"); I(f"v_lshl_or_b32 {v(t3)}, {v(t4)}, 2, {v(t3)}")
        I(f"s_mul_i32 s{sT2}, s{sW}, 1280"); I(f"s_lshl_b32 s{sT3}, s{sSub}, 8"); I(f"s_add_u32 s{sT2}, s{sT2}, s{sT3}")
        I(f"v_add_u32 {v(t3)}, s{sT2}, {v(t3)}")
        I(f"global_load_dword {v(vXpk)}, {v(t3)}, {sp(pX)}")
        I("L_noq:")
        self.vm = []
        for i in range(4): self.item(i)
        self.make_srd(rV, pV, sT0, 131072)
        I(f"s_mov_b32 s{rWS}, s{pWS}"); I(f"s_mov_b32 s{rWS+1}, s{pWS+1}"); I(f"s_mov_b32 s{rWS+2}, {WS_USED}"); I(f"s_mov_b32 s{rWS+3}, 0x20000")
        I(f"s_getpc_b64 {sp(sAny)}")
        I("L_pc:")
        I(f"s_lshr_b32 s{sT2}, s2, 3"); I(f"s_lshl_b32 s{sT2}, s{sT2}, 2"); I(f"s_add_u32 s{sT2}, s{sT2}, s{sW}"); I(f"s_lshl_b32 s{sT2}, s{sT2}, 10")
        I(f"v_lshlrev_b32 {v(t5)}, 4, {v(vL)}")
        I(f"s_min_u32 s{sT2}, s{sT2}, L_codeend-L_pc-1024")
        I(f"v_add_u32 {v(t4)}, s{sT2}, {v(t5)}")
        self.vmop(f"global_load_dwordx4 {vr(vG,4)}, {v(t4)}, {sp(sAny)}", None)
        I(f"s_lshl_b32 s{sT2}, s2, 2"); I(f"s_add_u32 s{sT2}, s{sT2}, s{sW}"); I(f"s_lshl_b32 s{sT2}, s{sT2}, 11")
        I(f"s_cmp_lt_u32 s{sT2}, {Z1}"); I(f"s_cselect_b32 s{sT3}, s{sS32}, -1")
        assert Z1 % 2048 == 0 and Z2 % 2048 == 0
        for k in range(4): I(f"v_mov_b32 {v(vG+4+k)}, s{sT3}")
        I(f"s_cmp_ge_u32 s{sT2}, {Z2}"); I("s_cbranch_scc1 L_noclr")
        I(f"buffer_store_dwordx4 {vr(vG+4,4)}, {v(t5)}, {srd(rWS)}, s{sT2} offen sc1")
        I(f"buffer_store_dwordx4 {vr(vG+4,4)}, {v(t5)}, {srd(rWS)}, s{sT2} offen offset:1024 sc1")
        I("L_noclr:")
        I(f"s_lshl_b32 s{sT2}, s{sH}, 2"); I(f"s_add_u32 s{sT2}, s{sT2}, s{sW}")
        I(f"s_mul_i32 s{sT3}, s{sT2}, 3200"); I(f"s_lshl_b32 s{sT1}, s{sSub}, 7"); I(f"s_add_u32 s{sT3}, s{sT3}, s{sT1}")
        I(f"v_mul_u32_u24 {v(t3)}, 640, {v(t2)}"); I(f"v_lshl_add_u32 {v(t4)}, {v(t1)}, 3, s{sT3}")
        I(f"v_add_u32 {v(vPub)}, {v(t3)}, {v(t4)}")
        I(f"v_add_u32 {v(t4)}, 2560, {v(t4)}"); I(f"v_mov_b32 {v(t6)}, {OOB:#x}")
        I(f"v_cmp_eq_u32 vcc, 0, {v(t2)}"); I(f"v_cndmask_b32 {v(vPubC)}, {v(t6)}, {v(t4)}, vcc")
        I(f"s_lshl_b32 s{sT3}, s{sT2}, 6"); I(f"s_lshl_b32 s{sT1}, s{sSub}, 3"); I(f"s_add_u32 s{sT3}, s{sT3}, s{sT1}")
        I(f"v_lshrrev_b32 {v(t3)}, 5, {v(vL)}"); I(f"v_lshl_add_u32 {v(t3)}, {v(t3)}, 2, s{sT3}")
        I(f"v_and_b32 {v(t4)}, 31, {v(vL)}"); I(f"v_cmp_eq_u32 vcc, 31, {v(t4)}"); I(f"v_cndmask_b32 {v(vPubS)}, {v(t6)}, {v(t3)}, vcc")
        I(f"s_mov_b32 s{sMG}, {MB_Q0}"); I(f"s_mov_b32 s{sMGS}, {MB_QS0}")
        I(f"s_cmp_lg_u32 s{sRole}, 0"); I("s_cbranch_scc1 L_noq2")
        for k in range(2): I(f"v_mov_b32 {v(vG+8+k)}, s{sS32}")
        I(f"buffer_store_dwordx2 {vr(vG+8,2)}, {v(vPub)}, {srd(rWS)}, s{sMG} offen sc1")
        I(f"buffer_store_dwordx2 {vr(vG+8,2)}, {v(vPubC)}, {srd(rWS)}, s{sMG} offen sc1")
        I(f"buffer_store_dword {v(vG+8)}, {v(vPubS)}, {srd(rWS)}, s{sMGS} offen sc1")
        I("L_noq2:")
        self.vm.append("clr")
        for i in range(4, 12): self.item(i)
        I(f"s_mov_b32 s{sFast}, 0"); I(f"s_mov_b32 s{sCnt}, 0"); I(f"s_mov_b32 s{sLayer}, 0")
        I(f"s_mov_b32 s{sC640}, 0x3acccccd")
        I(f"s_mov_b32 s{sEps}, 0x3727c5ac")
        I(f"s_mov_b32 s{sKs}, 0x3e0293ee")
        I(f"s_mov_b32 s{sMA}, {MB_A0}"); I(f"s_mov_b32 s{sMAS}, {MB_AS0}"); I(f"s_mov_b32 s{sMO}, {MB_O0}")
        I(f"s_mov_b32 s{sMD}, {MB_D0}"); I(f"s_mov_b32 s{sMH}, {MB_H0}")
        I(f"s_getreg_b32 s{sXcc}, hwreg(HW_REG_XCC_ID, 0, 4)"); I(f"s_or_b32 s{sXcc}, s{sXcc}, 0x80")
        I(f"v_and_b32 {v(t3)}, 1, {v(vL)}"); I(f"v_mul_u32_u24 {v(vIdx)}, 0xaaaa, {v(t3)}"); I(f"v_add_u32 {v(vIdx)}, 0x4444, {v(vIdx)}")
        I(f"v_lshlrev_b32 {v(t7)}, 4, {v(t3)}"); I(f"v_lshl_or_b32 {v(t7)}, {v(t2)}, 5, {v(t7)}")
        I(f"v_add_u32 {v(vQLr)}, {QL}, {v(t7)}")
        I(f"s_lshl_b32 s{sT1}, s{sW}, 8"); I(f"s_add_u32 s{sT1}, s{sT1}, {PL}")
        I(f"v_add_u32 {v(vPLr)}, s{sT1}, {v(t7)}")
        I(f"v_and_b32 {v(t4)}, 56, {v(vL)}"); I(f"v_lshl_or_b32 {v(t4)}, {v(t3)}, 2, {v(t4)}")
        I(f"v_bfe_u32 {v(t5)}, {v(vL)}, 1, 2"); I(f"v_or_b32 {v(t4)}, {v(t4)}, {v(t5)}")
        I(f"v_lshl_add_u32 {v(vPLw)}, {v(t4)}, 2, s{sT1}")
        I(f"s_lshl_b32 s{sT1}, s{sH}, 3"); I(f"s_add_u32 s{sT1}, s{sT1}, s{sSub}"); I(f"s_lshl_b32 s{sT1}, s{sT1}, 8")
        I(f"v_lshl_add_u32 {v(vPubA)}, {v(t4)}, 2, s{sT1}")
        I(f"v_and_b32 {v(t5)}, 7, {v(t4)}"); I(f"v_bfe_u32 {v(t0)}, {v(vL)}, 3, 2"); I(f"v_lshl_or_b32 {v(t5)}, {v(t0)}, 4, {v(t5)}")
        I(f"v_lshlrev_b32 {v(t5)}, 2, {v(t5)}"); I(f"v_add_u32 {v(t5)}, {QL}, {v(t5)}"); I(f"v_mov_b32 {v(vQLw)}, {JUNK}")
        I(f"v_cmp_gt_u32 vcc, 32, {v(vL)}"); I(f"v_cndmask_b32 {v(vQLw)}, {v(vQLw)}, {v(t5)}, vcc")
        I(f"s_lshl_b32 s{sT1}, s{sH}, 9"); I(f"s_lshl_b32 s{sT3}, s{sSub}, 5"); I(f"s_add_u32 s{sT1}, s{sT1}, s{sT3}")
        I(f"v_and_b32 {v(t5)}, 7, {v(t4)}"); I(f"v_lshl_add_u32 {v(t5)}, {v(t5)}, 2, s{sT1}"); I(f"v_lshl_add_u32 {v(t5)}, {v(t0)}, 7, {v(t5)}")
        I(f"v_cndmask_b32 {v(vPubH)}, {v(t6)}, {v(t5)}, vcc")
        I(f"s_lshr_b32 s{sT1}, s{sSub}, 1"); I(f"v_mov_b32 {v(t5)}, s{sT1}"); I(f"v_cndmask_b32 {v(t5)}, 4, {v(t5)}, vcc")
        I(f"v_mad_u32_u24 {v(t5)}, {v(t0)}, 5, {v(t5)}"); I(f"v_mul_u32_u24 {v(t5)}, 640, {v(t5)}")
        I(f"v_and_b32 {v(t3)}, 7, {v(vL)}"); I(f"s_mul_i32 s{sT3}, s{sH}, 12800"); I(f"v_lshl_add_u32 {v(t3)}, {v(t3)}, 4, s{sT3}")
        I(f"v_add_u32 {v(vGA)}, {v(t5)}, {v(t3)}")
        I(f"v_cndmask_b32 {v(t5)}, 4, {v(t0)}, vcc"); I(f"v_mul_u32_u24 {v(t5)}, 640, {v(t5)}")
        I(f"s_mul_i32 s{sT3}, s{sSub}, 3200"); I(f"v_add3_u32 {v(vGH)}, {v(t5)}, {v(t3)}, s{sT3}")
        I(f"s_lshl_b32 s{sT3}, s{sH}, 8"); I(f"v_lshl_add_u32 {v(vGHS)}, {v(t0)}, 6, s{sT3}")
        I(f"s_lshl_b32 s{sT1}, s{sT1}, 6"); I(f"s_add_u32 s{sT3}, s{sT3}, s{sT1}"); I(f"v_mov_b32 {v(vGAS)}, s{sT3}")
        I(f"s_lshl_b32 s{sT1}, s{sH}, 7"); I(f"s_lshl_b32 s{sT3}, s{sSub}, 3"); I(f"s_add_u32 s{sT1}, s{sT1}, s{sT3}")
        I(f"v_mov_b32 {v(t5)}, s{sT1}"); I(f"v_cmp_eq_u32 vcc, 0, {v(vL)}"); I(f"v_cndmask_b32 {v(vPubAS)}, {v(t6)}, {v(t5)}, vcc")
        I(f"v_mov_b32 {v(vCst)}, {XL}")
        I(f"s_lshl_b32 s{sT1}, s{sW}, 2"); I(f"s_add_u32 s{sT3}, s{sT1}, {ML}"); I(f"v_mov_b32 {v(vMLw)}, s{sT3}")
        I(f"s_add_u32 s{sT3}, s{sT1}, {LL}"); I(f"v_mov_b32 {v(t5)}, s{sT3}"); I(f"v_mov_b32 {v(vLLw)}, {JUNK}")
        I(f"v_cmp_eq_u32 vcc, 63, {v(vL)}"); I(f"v_cndmask_b32 {v(vLLw)}, {v(vLLw)}, {v(t5)}, vcc")
        I(f"s_lshl_b32 s{sT1}, s{sW}, 9"); I(f"s_add_u32 s{sT1}, s{sT1}, {OL}"); I(f"v_lshl_add_u32 {v(vOLw)}, {v(vL)}, 2, s{sT1}")
        I(f"v_lshlrev_b32 {v(vOLr)}, 3, {v(vL)}"); I(f"v_add_u32 {v(vOLr)}, {OL}, {v(vOLr)}")
        I(f"v_and_b32 {v(t3)}, 1, {v(t1)}"); I(f"v_bfe_u32 {v(t4)}, {v(t1)}, 1, 1"); I(f"v_lshl_or_b32 {v(t3)}, {v(t3)}, 1, {v(t4)}")
        I(f"v_and_or_b32 {v(t3)}, {v(t1)}, 12, {v(t3)}"); I(f"v_xor_b32 {v(t3)}, {v(t3)}, {v(t2)}")
        I(f"v_lshl_add_u32 {v(t3)}, {v(t3)}, 4, s{sRing}"); I(f"v_lshl_add_u32 {v(vRK)}, {v(t1)}, 8, {v(t3)}")
        for k in (1, 2, 3): I(f"v_xor_b32 {v(vRK+k)}, {64*k}, {v(vRK)}")
        I(f"v_bfe_u32 {v(t0)}, {v(vL)}, 2, 2")
        I(f"v_bfe_u32 {v(t3)}, {v(vL)}, 3, 1")
        I(f"v_bfe_u32 {v(t4)}, {v(vL)}, 2, 1")
        I(f"v_lshl_add_u32 {v(t5)}, {v(t2)}, 2, {v(t3)}"); I(f"v_lshl_add_u32 {v(t5)}, {v(t4)}, 4, {v(t5)}")
        I(f"v_lshl_add_u32 {v(t5)}, {v(t5)}, 8, s{sRing}")
        I(f"v_bfe_u32 {v(vRV)}, {v(vL)}, 1, 1")
        I(f"v_lshl_or_b32 {v(vRV)}, {v(t3)}, 1, {v(vRV)}")
        I(f"v_bfe_u32 {v(vRV+1)}, {v(vL)}, 4, 1"); I(f"v_lshl_or_b32 {v(vRV)}, {v(vRV+1)}, 2, {v(vRV)}")
        I(f"v_mov_b32 {v(vRT)}, {v(vRV)}")
        I(f"v_lshl_or_b32 {v(vRV)}, {v(t4)}, 3, {v(vRV)}")
        I(f"v_and_b32 {v(t4)}, 1, {v(vL)}"); I(f"v_lshlrev_b32 {v(t4)}, 3, {v(t4)}")
        I(f"v_lshl_add_u32 {v(t5)}, {v(vRV)}, 4, {v(t5)}"); I(f"v_add_u32 {v(vRV)}, {v(t5)}, {v(t4)}")
        I(f"v_xor_b32 {v(vRV+1)}, 16, {v(vRV)}"); I(f"v_add_u32 {v(vRV+1)}, 512, {v(vRV+1)}")
        for e in range(1, 8):
            I(f"v_xor_b32 {v(vRV+2*e)}, {32*e}, {v(vRV)}"); I(f"v_xor_b32 {v(vRV+2*e+1)}, {32*e}, {v(vRV+1)}")
        I(f"v_lshl_add_u32 {v(vRT)}, {v(vRT)}, 4, {v(t4)}"); I(f"v_lshl_add_u32 {v(vRT)}, {v(t0)}, 7, {v(vRT)}")
        I(f"v_lshl_add_u32 {v(vRT)}, {v(t2)}, 10, {v(vRT)}")
        self.zero(range(vS, vS + 32)); self.zero(range(vO, vO + 32))
        I(f"s_lshl_b32 s{sT1}, s{sHH}, 3"); I(f"s_add_u32 s{sT1}, s{sT1}, s{sX}")
        I(f"s_cmp_lt_u32 s{sT1}, 27"); I(f"s_cselect_b32 s{sHasG}, 1, 0")
        I(f"s_cmp_lg_u32 s{sRole}, 0"); I("s_cbranch_scc1 L_od_setup")
        I(f"s_lshl_b32 s{sT3}, s{sSub}, 2"); I(f"s_add_u32 s{sT3}, s{sT3}, s{sW}"); I(f"s_lshl_b32 s{sT3}, s{sT3}, 12")
        I(f"v_lshl_add_u32 {v(vXG)}, {v(vL)}, 4, s{sT3}")
        I(f"v_bfe_u32 {v(t3)}, {v(vL)}, 2, 3"); I(f"v_lshrrev_b32 {v(t5)}, 5, {v(vL)}"); I(f"v_lshl_or_b32 {v(t3)}, {v(t3)}, 1, {v(t5)}")
        I(f"v_and_b32 {v(t5)}, 3, {v(vL)}"); I(f"v_lshl_or_b32 {v(t3)}, {v(t3)}, 2, {v(t5)}")
        I(f"s_mul_i32 s{sT3}, s{sW}, 272"); I(f"s_add_u32 s{sT3}, s{sT3}, {XL}"); I(f"v_lshl_add_u32 {v(vXLw)}, {v(t3)}, 2, s{sT3}")
        I(f"v_lshrrev_b32 {v(t3)}, 2, {v(t1)}"); I(f"v_and_b32 {v(t5)}, 2, {v(vL)}"); I(f"v_cmp_eq_u32 vcc, 0, {v(t5)}")
        I(f"v_cndmask_b32 {v(t3)}, 4, {v(t3)}, vcc"); I(f"v_mul_u32_u24 {v(t3)}, 272, {v(t3)}"); I(f"v_add3_u32 {v(vXLr)}, {v(t3)}, {v(t7)}, {v(vCst)}")
        I(f"v_mov_b32 {v(t3)}, 0x3f803f80"); I(f"v_lshl_add_u32 {v(t5)}, {v(vL)}, 2, {v(vCst)}")
        I(f"ds_write_b32 {v(t5)}, {v(t3)} offset:{4*272}")
        wa = vG + 16
        I(f"v_bfe_u32 {v(t3)}, {v(vL)}, 1, 1"); I(f"v_lshl_or_b32 {v(t3)}, {v(t0)}, 1, {v(t3)}")
        I(f"v_bfe_u32 {v(t5)}, {v(vL)}, 4, 1"); I(f"v_lshl_or_b32 {v(t3)}, {v(t5)}, 3, {v(t3)}")
        I(f"s_lshl_b32 s{sT3}, s{sW}, 2"); I(f"v_xor_b32 {v(t3)}, s{sT3}, {v(t3)}")
        I(f"v_lshl_add_u32 {v(t3)}, {v(t3)}, 4, {v(t4)}"); I(f"v_lshl_add_u32 {v(t3)}, {v(t0)}, 8, {v(t3)}"); I(f"v_lshl_add_u32 {v(t3)}, {v(t2)}, 11, {v(t3)}")
        I(f"v_add_u32 {v(wa)}, {24*1024}, {v(t3)}"); I(f"v_xor_b32 {v(wa+1)}, 32, {v(wa)}")
        I(f"v_add_u32 {v(wa+2)}, 0x10000, {v(wa)}"); I(f"v_add_u32 {v(wa+3)}, 0x10000, {v(wa+1)}")
        I(f"s_lshl_b32 s{sT3}, s{sW}, 5"); I(f"v_xor_b32 {v(vRT)}, s{sT3}, {v(vRT)}"); I(f"v_add_u32 {v(vRT+1)}, 0x10000, {v(vRT)}")
        self.wait_for("clr")
        def flag():
            I(f"s_cmp_lg_u32 s{sW}, 0"); nf = self.lab("nf"); I(f"s_cbranch_scc1 {nf}")
            I(f"s_lshl_b32 s{sT3}, s{sX}, 5"); I(f"s_lshr_b32 s{sT2}, s2, 3"); I(f"s_add_u32 s{sT3}, s{sT3}, s{sT2}")
            I(f"v_mov_b32 {v(vG+12)}, s{sT3}"); I(f"v_mov_b32 {v(vG+13)}, s{sXcc}")
            I(f"global_store_byte {v(vG+12)}, {v(vG+13)}, {sp(pDBG)} sc1")
            I(f"{nf}:")
        def post():
            flag()
            for tt in range(2):
                for kk in range(4):
                    for rd in range(2):
                        I(f"ds_read_b64_tr_b16 {vr(WQ+16*tt+4*kk+2*rd,2)}, {v(wa+tt+2*(kk>>1))} offset:{(kk&1)*32768+rd*1024}")
        self.gemv(WQ, sMG, sMGS, force_sc1=True, post_barrier=post)
        self.zero(range(vS, vS + 8))
        I(f"s_and_b32 s{sT2}, s{sW}, 1"); I(f"s_lshl_b32 s{sT2}, s{sT2}, 6"); I(f"s_lshl_b32 s{sT3}, s{sSub}, 7"); I(f"s_add_u32 s{sT2}, s{sT2}, s{sT3}")
        I(f"s_mul_i32 s{sT2}, s{sT2}, 3456"); I(f"s_lshl_b32 s{sT1}, s{sT1}, 7"); I(f"s_add_u32 s{sT2}, s{sT2}, s{sT1}")
        I(f"s_cmp_lt_u32 s{sW}, 2"); I(f"s_cselect_b32 s{rT}, s{pWG}, s{pWU}"); I(f"s_cselect_b32 s{rT+1}, s{pWG+1}, s{pWU+1}")
        I(f"s_add_u32 s{rT}, s{rT}, s{sT2}"); I(f"s_addc_u32 s{rT+1}, s{rT+1}, 0")
        I(f"s_mul_i32 s{rT+2}, s{sHasG}, {63*3456+128}")
        I(f"s_mov_b32 s{sInc}, {8*3456}"); I(f"s_movk_i32 s{sT3}, 3456")
        I("s_barrier")
        I("s_branch L_stream")
        I("L_od_setup:")
        I(f"s_mul_i32 s{sCB}, s{sHH}, 3"); I(f"s_add_u32 s{sCB}, s{sCB}, s{sSub}"); I(f"s_sub_u32 s{sCB}, s{sCB}, 5")
        I(f"s_cmp_lt_u32 s{sCB}, 10"); I(f"s_cselect_b32 s{sRole}, 1, 2")
        I(f"s_lshl_b32 s{sT2}, s{sX}, 2"); I(f"s_add_u32 s{sT2}, s{sT2}, s{sW}")
        I(f"s_lshl_b32 s{sT3}, s{sT2}, 11"); I(f"v_lshrrev_b32 {v(t3)}, 1, {v(t1)}"); I(f"v_lshl_add_u32 {v(t3)}, {v(t3)}, 8, s{sT3}"); I(f"v_add_u32 {v(vOA)}, {v(t3)}, {v(t7)}")
        I(f"s_lshl_b32 s{sT3}, s{sT2}, 7"); I(f"v_lshl_add_u32 {v(vOS)}, {v(t2)}, 4, s{sT3}")
        I(f"s_lshl_b32 s{sT3}, s{sT2}, 9"); I(f"v_lshrrev_b32 {v(t3)}, 2, {v(t1)}"); I(f"v_lshl_add_u32 {v(t3)}, {v(t3)}, 7, s{sT3}"); I(f"v_add_u32 {v(vDA)}, {v(t3)}, {v(t7)}")
        I(f"s_lshl_b32 s{sT3}, s{sW}, 10"); I(f"s_add_u32 s{sT3}, s{sT3}, {RLO}"); I(f"v_lshl_add_u32 {v(t3)}, {v(t2)}, 8, s{sT3}"); I(f"v_lshl_add_u32 {v(vRLw)}, {v(t1)}, 2, {v(t3)}")
        I(f"v_lshlrev_b32 {v(vRLr)}, 4, {v(vL)}"); I(f"v_add_u32 {v(vRLr)}, {RLO}, {v(vRLr)}")
        I(f"s_lshr_b32 s{sT3}, s{sCB}, 1"); I(f"s_lshl_b32 s{sT3}, s{sT3}, 14"); I(f"s_lshl_b32 s{sT1}, s{sX}, 9"); I(f"s_add_u32 s{sT3}, s{sT3}, s{sT1}")
        I(f"s_and_b32 s{sT1}, s{sCB}, 1"); I(f"s_lshl_b32 s{sT1}, s{sT1}, 8"); I(f"s_add_u32 s{sT3}, s{sT3}, s{sT1}")
        I(f"v_lshl_add_u32 {v(t3)}, {v(t2)}, 12, s{sT3}"); I(f"v_lshl_add_u32 {v(vPubO)}, {v(t1)}, 4, {v(t3)}")
        I(f"v_add_u32 {v(vRT)}, s{sRing}, {v(vRT)}")
        for k in (1, 2, 3): I(f"v_xor_b32 {v(vRT+k)}, {32*k}, {v(vRT)}")
        I(f"s_lshl_b32 s{sT1}, s{sW}, 3"); I(f"s_add_u32 s{sT1}, s{sT1}, s{sX}"); I(f"s_cmp_lt_u32 s{sT1}, 27"); I(f"s_cselect_b32 s{sHasG}, 1, 0")
        I(f"s_mul_i32 s{sT2}, s{sT2}, {128*1280}"); I(f"s_lshl_b32 s{sT3}, s{sCB}, 7"); I(f"s_add_u32 s{sT2}, s{sT2}, s{sT3}")
        self.make_srd(rT, pWO, sT2, 127 * 1280 + 128)
        I(f"s_cmp_eq_u32 s{sRole}, 1"); I(f"s_cselect_b32 s{rT+2}, s{rT+2}, 0")
        I(f"s_mov_b32 s{sInc}, {8*1280}"); I(f"s_movk_i32 s{sT3}, 1280")
        self.wait_for("clr")
        I("s_barrier")
        flag_sv = sT3
        I(f"s_mov_b32 s{sT0}, s{sT3}")
        flag()
        I(f"s_mov_b32 s{sT3}, s{sT0}")
        I("L_stream:")
        I(f"v_lshrrev_b32 {v(t3)}, 3, {v(vL)}"); I(f"v_and_b32 {v(t4)}, 7, {v(vL)}"); I(f"v_and_b32 {v(t5)}, 2, {v(t3)}")
        I(f"v_xor_b32 {v(t4)}, {v(t4)}, {v(t5)}"); I(f"v_mul_u32_u24 {v(t3)}, s{sT3}, {v(t3)}")
        I(f"v_lshl_add_u32 {v(vTo)}, {v(t4)}, 4, {v(t3)}"); I(f"v_xor_b32 {v(t4)}, 4, {v(t4)}"); I(f"v_lshl_add_u32 {v(vTo+1)}, {v(t4)}, 4, {v(t3)}")
        self.stamp()
        nxt = 12
        for g in range(8):
            I("s_waitcnt lgkmcnt(0)")
            for i in range(nxt, nxt + 4): self.item(i)
            nxt += 4
            self.wait_for(4 * g + 3)
            self.k_read(g)
            if g == 3:
                I(f"v_lshlrev_b32 {v(t3)}, 2, {v(vL)}")
                self.vmop(f"global_load_dword {v(vG)}, {v(t3)}, {sp(pDBG)} sc1", "flags")
        self.wait_for("flags")
        fp, fc, fr, fk = (self.lab(x) for x in ("fp", "fc", "fr", "fk"))
        I(f"{fc}:")
        I(f"v_and_b32 {v(t4)}, 0x80808080, {v(vG)}"); I(f"v_cmp_ne_u32 vcc, 0x80808080, {v(t4)}"); I(f"s_cbranch_vccnz {fr}")
        I(f"{fk}:")
        self.cold.append([f"{fp}:", f"global_load_dword {v(vG)}, {v(t3)}, {sp(pDBG)} sc1", "s_waitcnt vmcnt(0)", f"s_branch {fc}"])
        self.retry(fr, fp, fk, None)
        I(f"s_mul_i32 s{sT0}, s{sXcc}, 0x01010101"); I(f"v_cmp_ne_u32 vcc, s{sT0}, {v(vG)}")
        I(f"s_lshl_b32 s{sT1}, s{sX}, 3"); I(f"s_lshr_b64 {sp(sAny)}, vcc, s{sT1}"); I(f"s_and_b32 s{sT1}, s{sAny}, 0xff")
        I(f"s_cselect_b32 s{sFast}, 0, 1")
        w0 = self.lab("gi")
        I(f"s_cmp_lg_u32 s{sW}, 0"); I(f"s_cbranch_scc1 {w0}")
        for p in range(5):
            I(f"buffer_load_dwordx4 {vr(vG+4*p,4)}, {v(vGA)}, {srd(rWS)}, s{sMG} offen offset:{p*128} sc1")
        I(f"{w0}:")
        self.g5_issue(vGA, vGAS, sMG, sMGS, data=False)
        self.vm += [None, None, "q"]
        I("s_waitcnt lgkmcnt(0)")
        for i in range(44, 52): self.item(i)
        self.wait_for("q")
        self.stamp()
        self.v_read(0)
        self.a_input(sMG, sMGS, preissued=True)
        self.qk_softmax()
        I("s_waitcnt lgkmcnt(0)")
        for grp in self.factor_ops():
            for x in grp: I(x)
        self.stamp()
        for i in range(52, 60): self.item(i)
        self.wait_for(47)
        self.v_read(1)
        I("s_waitcnt lgkmcnt(0)")
        for e in range(8): self.pv(e, 0)
        for i in range(60, 68): self.item(i)
        self.wait_for(55)
        self.v_read(2)
        for i in range(68, 72): self.item(i)
        self.wait_for(63)
        self.stamp()
        self.v_read(3)
        for e in range(8):
            I(f"s_waitcnt lgkmcnt({min(15, 14-2*e)})")
            self.pv(e, 1)
        for e in range(8): self.o_compact(e)
        I(f"s_mov_b32 s{sMG}, {MB_G0}"); I(f"s_mov_b32 s{sMGS}, {MB_GS0}")
        I("L_a_end:")
        self.a_end()
        self.stamp()
        I(f"s_cmp_eq_u32 s{sRole}, 1"); I("s_cbranch_scc1 L_od")
        I(f"s_cmp_eq_u32 s{sRole}, 2"); I("s_cbranch_scc1 L_next")
        self.zero(range(vS, vS + 8))
        I(f"s_cmp_eq_u32 s{sHasG}, 0"); I("s_cbranch_scc1 L_qg_nog")
        I(f"s_cmp_lg_u32 s{sLayer}, 0"); I("s_cbranch_scc1 L_qg_g")
        I("s_waitcnt vmcnt(0)"); I("s_barrier")
        for gu in range(2):
            for kk in range(4):
                for rd in range(2):
                    I(f"ds_read_b64_tr_b16 {vr(WG+16*gu+4*kk+2*rd,2)}, {v(vRT+gu)} offset:{(kk>>1)*32768+(kk&1)*4096+rd*512}")
        I("L_qg_g:")
        self.xg(sMO)
        self.stamp()
        self.gemv(WG, sMG, sMGS)
        self.stamp()
        I(f"s_cmp_lg_u32 s{sW}, 0"); I("s_cbranch_scc1 L_qg_h_done")
        I(f"s_cmp_eq_u32 s{sSub}, 4"); I("s_cbranch_scc1 L_qg_h_done")
        self.h_stage()
        I("L_qg_h_done:")
        self.stamp()
        I(f"s_cmp_lg_u32 s{sLayer}, 0"); I("s_cbranch_scc1 L_end_prof")
        self.zero(range(vS, vS + 8))
        I("L_qg_q:")
        self.xg(sMD)
        self.stamp()
        I(f"s_mov_b32 s{sMG}, {MB_Q1}"); I(f"s_mov_b32 s{sMGS}, {MB_QS1}")
        self.gemv(WQ, sMG, sMGS)
        I("L_next:")
        I(f"s_cmp_lg_u32 s{sLayer}, 0"); I("s_cbranch_scc1 L_end_prof")
        self.stamp()
        I(f"s_mov_b32 s{sLayer}, 1")
        I(f"s_mov_b32 s{sMG}, {MB_Q1}"); I(f"s_mov_b32 s{sMGS}, {MB_QS1}")
        I(f"s_mov_b32 s{sMA}, {MB_A1}"); I(f"s_mov_b32 s{sMAS}, {MB_AS1}"); I(f"s_mov_b32 s{sMO}, {MB_O1}")
        I(f"s_mov_b32 s{sMD}, {MB_D1}"); I(f"s_mov_b32 s{sMH}, {MB_H1}")
        self.zero([vS + 4 * t + k for t in range(8) for k in range(2)])
        self.zero([vO + 4 * t + k for t in range(8) for k in range(2)])
        self.a_input(sMG, sMGS, preissued=False)
        self.stamp()
        self.qk_softmax()
        I(f"s_mov_b32 s{sMG}, {MB_G1}"); I(f"s_mov_b32 s{sMGS}, {MB_GS1}")
        I("s_waitcnt lgkmcnt(0)")
        fo = self.factor_ops()
        for e in range(8):
            self.pv(e, 0); self.pv(e, 1)
            for x in fo[e]: I(x)
            if e >= 4: self.o_compact(e - 4)
        for e in range(4, 8): self.o_compact(e)
        I("s_branch L_a_end")
        I("L_qg_nog:")
        self.xg(sMO)
        self.x_unpack()
        I(f"s_cmp_eq_u32 s{sLayer}, 0"); I("s_cbranch_scc1 L_qg_q")
        I(f"s_sub_u32 s{sT0}, s{sX}, 4"); I(f"s_cmp_lg_u32 s{sT0}, s{sW}"); I("s_cbranch_scc1 L_end_prof")
        I(f"v_and_b32 {v(vT+8)}, 31, {v(vL)}"); I(f"v_lshrrev_b32 {v(vT+9)}, 5, {v(vL)}")
        I(f"v_lshlrev_b32 {v(vT+8)}, 3, {v(vT+8)}"); I(f"v_lshl_or_b32 {v(vT+8)}, {v(vT+9)}, 2, {v(vT+8)}")
        I(f"s_mul_i32 s{sT2}, s{sW}, 1280"); I(f"s_lshl_b32 s{sT3}, s{sSub}, 8"); I(f"s_add_u32 s{sT2}, s{sT2}, s{sT3}")
        I(f"v_add_u32 {v(vT+8)}, s{sT2}, {v(vT+8)}")
        self.xg(sMD)
        I(f"global_store_dword {v(vT+8)}, {v(vXpk)}, {sp(pOUT)}")
        self.stamp()
        I("s_branch L_end_prof")
        I("L_od:")
        I(f"s_cmp_lg_u32 s{sLayer}, 0"); I("s_cbranch_scc1 L_od_o")
        for i in range(72, 80): self.item(i)
        for kk in range(4):
            I(f"s_waitcnt vmcnt({12-4*kk})")
            for t in range(4):
                for rd in range(2):
                    I(f"ds_read_b64_tr_b16 {vr(WO+16*t+4*kk+2*rd,2)}, {v(vRT+t)} offset:{kk*4096+rd*512}")
        I("s_waitcnt lgkmcnt(0)")
        I("L_od_o:")
        self.stamp()
        self.o_stage()
        self.stamp()
        I(f"s_cmp_lg_u32 s{sLayer}, 0"); I("s_cbranch_scc1 L_od_d")
        I(f"s_lshl_b32 s{sT1}, s{sW}, 3"); I(f"s_add_u32 s{sT1}, s{sT1}, s{sX}"); I(f"s_mul_i32 s{sT1}, s{sT1}, {64*1280}")
        I(f"s_lshl_b32 s{sT3}, s{sCB}, 7"); I(f"s_add_u32 s{sT1}, s{sT1}, s{sT3}")
        self.make_srd(rT, pWD, sT1, 0)
        I(f"s_mul_i32 s{rT+2}, s{sHasG}, {63*1280+128}")
        for i in range(64, 72): self.item(i)
        I("s_waitcnt vmcnt(0)")
        for kk in range(2):
            for t in range(4):
                for rd in range(2):
                    I(f"ds_read_b64_tr_b16 {vr(WD+8*t+4*kk+2*rd,2)}, {v(vRT+t)} offset:{kk*4096+rd*512}")
        I("s_waitcnt lgkmcnt(0)")
        I("L_od_d:")
        self.d_stage()
        self.stamp()
        I("s_branch L_next")
        I("L_end_prof:")
        if self.prof:
            I(f"s_lshl_b32 s{sT2}, s2, 2"); I(f"s_add_u32 s{sT2}, s{sT2}, s{sW}"); I(f"s_lshl_b32 s{sT2}, s{sT2}, 8"); I(f"s_add_u32 s{sT2}, s{sT2}, {MB_PROF}")
            I(f"v_lshlrev_b32 {v(vT)}, 2, {v(vL)}")
            I(f"buffer_store_dword {v(vStampV)}, {v(vT)}, {srd(rWS)}, s{sT2} offen")
            I(f"s_cmp_lg_u32 s2, 196"); I("s_cbranch_scc1 L_end"); I(f"s_cmp_lg_u32 s{sW}, 0"); I("s_cbranch_scc1 L_end")
            I(f"v_readlane_b32 s{sT0}, {v(vStampV)}, 0"); I(f"v_subrev_u32 {v(vT+1)}, s{sT0}, {v(vStampV)}")
            I(f"global_store_dword {v(vT)}, {v(vT+1)}, {sp(pDBG)} sc1")
        I("L_end:")
        I("s_endpgm")
        for c in self.cold:
            for x in c: I(x)
        I("s_endpgm")
        I(".p2align 6")
        I("L_codeend:")
        errs = self.a.check_branches()
        assert not errs, "\n".join(errs)
        head = [f"; @launch grid=(256,1,1) block=(256,1,1) lds={LDS_BYTES}",
                "; generated by dev/gen.py (hand-written generator); persistent kernel, one workgroup per CU",
                '.amdgcn_target "amdgcn-amd-amdhsa--gfx950"', ".text", f".globl {NAME}_kernel", ".p2align 8", f".type {NAME}_kernel,@function"]
        tail = ['.section .rodata,"a"', ".p2align 6", f".amdhsa_kernel {NAME}_kernel",
                "  .amdhsa_next_free_vgpr 512", "  .amdhsa_next_free_sgpr 96", "  .amdhsa_accum_offset 256",
                "  .amdhsa_group_segment_fixed_size 0", "  .amdhsa_kernarg_size 96", "  .amdhsa_user_sgpr_count 2",
                "  .amdhsa_user_sgpr_kernarg_segment_ptr 1", "  .amdhsa_system_sgpr_workgroup_id_x 1",
                "  .amdhsa_float_denorm_mode_32 3", ".end_amdhsa_kernel"]
        return "\n".join(head) + "\n" + self.a.text() + "\n".join(tail) + "\n"

if __name__ == "__main__":
    open("k.s", "w").write(Gen(False).build())
    open("k_prof.s", "w").write(Gen(True).build())
    print("vgprs used", vn[0], "LDS", LDS_BYTES, "WS", WS_USED, "Z1", Z1, "Z2", Z2, "PROF", MB_PROF)
```

```python
import sys
from asmlib import Asm
NAME = "interleave_layers__sliding_block_cached__glu_gated_reglu__decode"

off = 0
def take(n):
    global off
    o = off; off += n; return o
MB_A0 = take(8192); MB_A1 = take(8192); MB_H0 = take(2048); MB_H1 = take(2048)
Z2 = off
MB_AS0 = take(512); MB_AS1 = take(512)
SZ_QG = 4 * 4 * 5 * 5 * 128
MB_R = take(SZ_QG)
MB_S = take(2048)
MB_X = take(32 * 128)
take(-off % 4096)
GSTRIDE = off
off = 8 * GSTRIDE
SZ_OD = 5 * 4 * 4096
MB_O0 = take(SZ_OD); MB_O1 = take(SZ_OD); MB_D0 = take(SZ_OD); MB_D1 = take(SZ_OD)
SZ_F = 64 * 128
MB_F = take(4 * SZ_F)
MB_E = take(256)
MB_PROF = take(1024 * 256)
WS_USED = off
S16 = 0xFFFFFFFF
OOB = 0x80000000
TOUCH_OFF = 0
LIMIT = 1 << 20

RING = 0
XL = 131072
QL = XL + 1536
PL = QL + 256
ML = PL + 1024
LL = ML + 16
JUNK = LL + 16
OL = QL + 2048
RLO = OL + 2048
RLD = RLO + 4096
LDS_BYTES = RLD + 4096

pX, pK, pV, pWQ, pWO, pWG, pWU, pWD, pOUT, pDBG, pWS = 16, 18, 20, 22, 24, 28, 30, 32, 34, 36, 38
rK, rV, rWS, rT, rGR = 40, 44, 48, 52, 4
(sW, sX, sHH, sSub, sH, sRole, sHasG, sOff, sRing, sInc, sFast, sCnt, sLayer, sT0, sT1, sT2, sT3,
 sSt, sFq, sMA, sMAS, sMO, sMD, sMH, sMR, sXcc, sCB, sStamp, sM0, sC640, sEps, sKs) = range(56, 88)
sMF = 92; sTag = 93
sTime = 88
sAny = 90
def srd(r): return f"s[{r}:{r+3}]"
def sp(r): return f"s[{r}:{r+1}]"

vn = [1]
def valloc(n=1, align=1):
    while vn[0] % align: vn[0] += 1
    r = vn[0]; vn[0] += n; return r
vL = valloc(); vIdx = valloc(); vStampV = valloc()
vKV = 224; vRK = 228; vRV = 232
vTo = valloc(2); vRT = valloc(4)
vXG = valloc(); vXLw = valloc(); vXLr = valloc(); vPub = valloc(); vPubC = valloc(); vPubS = valloc()
vGA = valloc(); vGAS = valloc(); vGH = valloc(); vGHS = valloc(); vPubH = valloc()
vQLw = valloc(); vQLr = valloc(); vPLw = valloc(); vPLr = valloc(); vMLw = valloc(); vLLw = valloc(); vOLw = valloc(); vOLr = valloc()
vPubA = valloc(); vPubAS = valloc(); vCst = valloc()
vFl = 248; vFlagsV = 220; vFa = 250; vQ0 = 255
vOA = vXG; vOS = vXLw; vDA = vXLr; vRLw = vPub; vRLr = vPubC; vPubO = vPubS
vXres = valloc(2, 2); vKf = valloc(); vMk = valloc(); vF = valloc(); vPs = valloc(); vXpk = valloc()
vT = valloc(16, 4)
vG = valloc(32, 4)
vA = valloc(8, 4)
vS = valloc(32, 4)
vO = valloc(32, 4)
vW = 160
assert vn[0] <= vW, vn[0]
WQ = vW; WG = vW + 32; WO = vW; WD = vW + 64
def v(r): return f"v{r}"
def vr(r, n): return f"v[{r}:{r+n-1}]"
def ar(r, n): return f"a[{r}:{r+n-1}]"
DPPALL = "row_mask:0xf bank_mask:0xf"

DEFAULTS = dict(pre=2)
class Gen:
    def __init__(self, prof=False, **opt):
        self.a = Asm(); self.prof = prof; self.opt = dict(DEFAULTS, **opt)
        self.vm = []
        self.cold = []
        self.uid = 0
    def I(self, t): self.a(t)
    def lab(self, p):
        self.uid += 1; return f"L_{p}_{self.uid}"
    def vmop(self, text, tag=None):
        self.I(text); self.vm.append(tag)
    def wait_for(self, tag):
        k = max(i for i, t in enumerate(self.vm) if t == tag)
        n = sum(1 for t in self.vm[k + 1:] if t not in ("q0", "q1"))
        self.I(f"s_waitcnt vmcnt({n})")
    def stamp(self):
        if not self.prof: return
        I = self.I
        I(f"s_memrealtime {sp(sTime)}"); I(f"s_mov_b32 s{sM0}, m0"); I(f"s_mov_b32 m0, s{sStamp}")
        I("s_waitcnt lgkmcnt(0)"); I(f"v_writelane_b32 {v(vStampV)}, s{sTime}, m0")
        I(f"s_mov_b32 m0, s{sM0}"); I(f"s_add_u32 s{sStamp}, s{sStamp}, 1")
    def pub_local(self, stores, cmp=True, flag=None):
        slow = self.lab("slow"); done = self.lab("pubd")
        if cmp: self.I(f"s_cmp_eq_u32 s{sFast if flag is None else flag}, 0")
        self.I(f"s_cbranch_scc1 {slow}")
        for s in stores: self.I(s)
        self.I(f"{done}:")
        self.cold.append([f"{slow}:"] + [s + " sc1" for s in stores] + [f"s_branch {done}"])
    def retry(self, name, again, ok, raws=None):
        self.cold.append([f"{name}:", f"s_add_u32 s{sCnt}, s{sCnt}, 1", f"s_cmp_lt_u32 s{sCnt}, {LIMIT}", f"s_cbranch_scc1 {again}", f"s_branch {ok}"])
    def tagchk(self, bad, regs, stag, first=False):
        for k, r in enumerate(regs):
            if first and k == 0: self.I(f"v_xor_b32 {v(bad)}, s{stag}, {v(r)}")
            else: self.I(f"v_bitop3_b32 {v(bad)}, {v(bad)}, {v(r)}, s{stag} bitop3:0xf6")
    def settag(self, regs, stag):
        for r in regs: self.I(f"v_bfi_b32 {v(r)}, v0, s{stag}, {v(r)}")

    def dma(self, voff, rs, tag, inc):
        self.vmop(f"buffer_load_dwordx4 {v(voff)}, {srd(rs)}, s{sOff} offen nt lds", tag)
        self.I("s_addk_i32 m0, 1024")
        if isinstance(inc, int): self.I(f"s_addk_i32 s{sOff}, {inc}") if inc < 32768 else self.I(f"s_add_u32 s{sOff}, s{sOff}, {inc}")
        else: self.I(f"s_add_u32 s{sOff}, s{sOff}, {inc}")
    def item(self, i):
        thr = self.opt.get('thr', 0)
        if thr and i >= self.opt.get('thr0', 0) and i < self.opt.get('thr1', 80): self.I(f"s_waitcnt vmcnt({thr-1})")
        if i in (0, 32):
            self.I(f"s_mov_b32 m0, s{sRing}"); self.I(f"s_lshl_b32 s{sOff}, s{sW}, 10")
        if i == 64:
            self.I(f"s_mov_b32 m0, s{sRing}"); self.I(f"s_mov_b32 s{sOff}, 0")
        if i < 32: self.dma(vKV + (i & 3), rK, i, 4096)
        elif i < 64:
            j = i - 32; self.dma(vKV + (j & 1) + 2 * ((j >> 2) & 1), rV, i, 4096)
        else: self.dma(vTo + (i & 1), rT, i, f"s{sInc}")
    def k_read(self, t):
        for s in range(4):
            self.I(f"ds_read_b128 {ar(16*t+4*s,4)}, {v(vRK+s)} offset:{t*4096}")
    def v_read(self, s):
        for e in range(8):
            for rd in range(2):
                self.I(f"ds_read_b64_tr_b16 {ar(128+16*e+4*s+2*rd,2)}, {v(vRV+2*e+rd)} offset:{s*8192}")

    def xg(self, smb):
        I = self.I
        poll = self.lab("xg"); rt = self.lab("xgr"); ok = self.lab("xgk")
        hp = self.lab("xh"); hr = self.lab("xhr")
        bad = vT + 4
        I(f"{hp}:")
        I(f"buffer_load_dword {v(vT)}, {v(vFl)}, {srd(rWS)}, s{sMF} offen sc1")
        I("s_waitcnt vmcnt(0)")
        I(f"v_cmp_ne_u32 vcc, s{sTag}, {v(vT)}")
        I(f"s_cbranch_vccnz {hr}")
        self.retry(hr, hp, poll)
        I(f"{poll}:")
        for u in range(4):
            I(f"buffer_load_dwordx4 {vr(vG+4*u,4)}, {v(vXG)}, {srd(rWS)}, s{smb} offen offset:{u*1024} sc1")
        I("s_waitcnt vmcnt(3)")
        self.tagchk(bad, range(vG, vG + 4), sTag, first=True)
        I("s_waitcnt vmcnt(2)")
        I(f"v_pk_add_f32 {vr(vT,2)}, {vr(vG,2)}, {vr(vG+4,2)}")
        I(f"v_pk_add_f32 {vr(vT+2,2)}, {vr(vG+2,2)}, {vr(vG+6,2)}")
        self.tagchk(bad, range(vG + 4, vG + 8), sTag)
        I("s_waitcnt vmcnt(1)")
        I(f"v_pk_add_f32 {vr(vT,2)}, {vr(vT,2)}, {vr(vG+8,2)}")
        I(f"v_pk_add_f32 {vr(vT+2,2)}, {vr(vT+2,2)}, {vr(vG+10,2)}")
        self.tagchk(bad, range(vG + 8, vG + 12), sTag)
        I("s_waitcnt vmcnt(0)")
        I(f"v_pk_add_f32 {vr(vT,2)}, {vr(vT,2)}, {vr(vG+12,2)}")
        I(f"v_pk_add_f32 {vr(vT+2,2)}, {vr(vT+2,2)}, {vr(vG+14,2)}")
        self.tagchk(bad, range(vG + 12, vG + 14), sTag)
        I(f"v_permlane32_swap_b32 {v(vT)}, {v(vT+2)}")
        I(f"v_permlane32_swap_b32 {v(vT+1)}, {v(vT+3)}")
        self.tagchk(bad, range(vG + 14, vG + 16), sTag)
        I(f"v_pk_add_f32 {vr(vT,2)}, {vr(vT,2)}, {vr(vT+2,2)}")
        I(f"v_and_b32 {v(bad)}, v0, {v(bad)}")
        I(f"v_pk_add_f32 {vr(vT,2)}, {vr(vT,2)}, {vr(vXres,2)}")
        I(f"v_cmp_ne_u32 vcc, 0, {v(bad)}")
        I(f"v_cvt_pk_bf16_f32 {v(vXpk)}, {v(vT)}, {v(vT+1)}")
        I(f"s_cbranch_vccnz {rt}")
        I(f"{ok}:")
        I(f"s_add_u32 s{sMF}, s{sMF}, {SZ_F}")
        self.retry(rt, poll, ok)
    def x_unpack(self):
        self.I(f"v_lshlrev_b32 {v(vXres)}, 16, {v(vXpk)}")
        self.I(f"v_and_b32 {v(vXres+1)}, 0xffff0000, {v(vXpk)}")
    def zero(self, regs):
        for r in regs: self.I(f"v_mov_b32 {v(r)}, 0")
    def gemv(self, W):
        I = self.I
        I(f"ds_write_b32 {v(vXLw)}, {v(vXpk)}")
        self.x_unpack()
        t0, t1 = vT + 4, vT + 5
        I(f"v_add_f32 {v(t0)}, {v(vXres)}, {v(vXres+1)}")
        I(f"v_mul_f32 {v(t1)}, {v(vXres)}, {v(vXres)}")
        I(f"v_fmac_f32 {v(t1)}, {v(vXres+1)}, {v(vXres+1)}")
        I("s_waitcnt lgkmcnt(0)"); I("s_barrier")
        I(f"ds_read_b128 {vr(vA,4)}, {v(vXLr)}")
        I(f"ds_read_b128 {vr(vA+4,4)}, {v(vXLr)} offset:128")
        I(f"v_permlane32_swap_b32 {v(t0)}, {v(t1)}")
        I(f"v_add_f32 {v(t0)}, {v(t0)}, {v(t1)}")
        I(f"v_mov_b32 {v(t1)}, s{sSt}")
        for k in (8, 4, 2, 1):
            I(f"v_add_f32_dpp {v(t0)}, {v(t0)}, {v(t0)} row_ror:{k} {DPPALL}")
        I("s_waitcnt lgkmcnt(1)")
        I(f"v_smfmac_f32_16x16x64_bf16 {vr(vS,4)}, {vr(vA,4)}, {vr(W,8)}, {v(vIdx)}")
        I(f"v_smfmac_f32_16x16x64_bf16 {vr(vS+4,4)}, {vr(vA,4)}, {vr(W+16,8)}, {v(vIdx)}")
        I("s_waitcnt lgkmcnt(0)")
        I(f"v_smfmac_f32_16x16x64_bf16 {vr(vS,4)}, {vr(vA+4,4)}, {vr(W+8,8)}, {v(vIdx)}")
        I(f"v_smfmac_f32_16x16x64_bf16 {vr(vS+4,4)}, {vr(vA+4,4)}, {vr(W+24,8)}, {v(vIdx)}")
        I(f"v_add_f32_dpp {v(t0)}, {v(t0)}, {v(t0)} row_bcast:15 row_mask:0xa bank_mask:0xf")
        self.pub_local([f"buffer_store_dwordx2 {vr(t0,2)}, {v(vPubS)}, {srd(rGR)}, 0 offen"])
        I(f"v_add_f32 {v(vT)}, {v(vS)}, {v(vS+1)}")
        I(f"v_add_f32 {v(vT+1)}, {v(vS+4)}, {v(vS+5)}")
        I(f"v_add_f32 {v(vT+2)}, {v(vS+2)}, {v(vS+3)}")
        I(f"v_add_f32 {v(vT+3)}, {v(vS+6)}, {v(vS+7)}")
        self.settag(range(vT, vT + 4), sSt)
        self.pub_local([f"buffer_store_dwordx2 {vr(vT,2)}, {v(vPub)}, {srd(rGR)}, s{sMR} offen",
                        f"buffer_store_dwordx2 {vr(vT+2,2)}, {v(vPubC)}, {srd(rGR)}, s{sMR} offen"], cmp=False)

    def g5_issue_stats(self, vst):
        self.I(f"buffer_load_dwordx4 {vr(vG+20,4)}, {v(vst)}, {srd(rGR)}, 0 offen sc1")
        self.I(f"buffer_load_dwordx4 {vr(vG+24,4)}, {v(vst)}, {srd(rGR)}, 0 offen offset:16 sc1")
        self.I(f"buffer_load_dwordx2 {vr(vG+28,2)}, {v(vst)}, {srd(rGR)}, 0 offen offset:32 sc1")
    def g5_issue_data(self, vdat):
        for p in range(5):
            self.I(f"buffer_load_dwordx4 {vr(vG+4*p,4)}, {v(vdat)}, {srd(rGR)}, s{sMR} offen offset:{p*128} sc1")
    def g5_stats(self, bad):
        I = self.I
        I(f"v_add_f32 {v(vT+8)}, {v(vG+20)}, {v(vG+22)}")
        I(f"v_add_f32 {v(vT+9)}, {v(vG+24)}, {v(vG+26)}")
        I(f"v_add_f32 {v(vT+8)}, {v(vT+8)}, {v(vG+28)}")
        I(f"v_add_f32 {v(vT+8)}, {v(vT+8)}, {v(vT+9)}")
        I(f"v_mul_f32 {v(vT+8)}, s{sC640}, {v(vT+8)}")
        I(f"v_mov_b32 {v(vT+9)}, {v(vT+8)}")
        self.tagchk(bad, range(vG + 21, vG + 30, 2), sSt, first=True)
        I(f"v_permlane32_swap_b32 {v(vT+8)}, {v(vT+9)}")
    def g5_var(self):
        I = self.I
        I(f"v_fma_f32 {v(vT+10)}, -{v(vT+8)}, {v(vT+8)}, {v(vT+9)}")
        I(f"v_max_f32 {v(vT+10)}, 0, {v(vT+10)}")
        I(f"v_add_f32 {v(vT+10)}, s{sEps}, {v(vT+10)}")
    def g5(self, vdat, vst):
        I = self.I
        bs, bd = vT + 11, vT + 12
        self.g5_issue_stats(vst); self.g5_issue_data(vdat)
        I("s_waitcnt vmcnt(5)")
        self.g5_stats(bs); self.g5_var()
        I("s_waitcnt vmcnt(3)")
        I(f"v_pk_add_f32 {vr(vT,2)}, {vr(vG,2)}, {vr(vG+4,2)}")
        I(f"v_pk_add_f32 {vr(vT+2,2)}, {vr(vG+2,2)}, {vr(vG+6,2)}")
        self.tagchk(bd, range(vG, vG + 8), sSt, first=True)
        I("s_waitcnt vmcnt(1)")
        I(f"v_pk_add_f32 {vr(vT+4,2)}, {vr(vG+8,2)}, {vr(vG+12,2)}")
        I(f"v_pk_add_f32 {vr(vT+6,2)}, {vr(vG+10,2)}, {vr(vG+14,2)}")
        I(f"v_pk_add_f32 {vr(vT,2)}, {vr(vT,2)}, {vr(vT+4,2)}")
        I(f"v_pk_add_f32 {vr(vT+2,2)}, {vr(vT+2,2)}, {vr(vT+6,2)}")
        self.tagchk(bd, range(vG + 8, vG + 16), sSt)
        I("s_waitcnt vmcnt(0)")
        I(f"v_pk_add_f32 {vr(vT,2)}, {vr(vT,2)}, {vr(vG+16,2)}")
        I(f"v_pk_add_f32 {vr(vT+2,2)}, {vr(vT+2,2)}, {vr(vG+18,2)}")
        self.tagchk(bd, range(vG + 16, vG + 18), sSt)
        for k in range(4):
            I(f"v_permlane32_swap_b32 {v(vT+k)}, {v(vT+4+k)}")
        self.tagchk(bd, range(vG + 18, vG + 20), sSt)
        I(f"v_and_or_b32 {v(bd)}, {v(bd)}, v0, {v(bs)}")
        for k in range(4):
            I(f"v_fma_f32 {v(vT+k)}, -{v(vT+8)}, {v(vT+4+k)}, {v(vT+k)}")
            if k == 0: I(f"v_cmp_ne_u32 vcc, 0, {v(bd)}")

    def a_input0(self):
        I = self.I
        c0, r0, p0, k0, join = (self.lab(x) for x in ("a0c", "a0r", "a0p", "a0k", "a0j"))
        bad = vT + 12
        I(f"v_mov_b32 {v(vT+10)}, 1.0")
        I(f"s_cmp_lg_u32 s{sW}, 0"); I(f"s_cbranch_scc1 {join}")
        I(f"{c0}:")
        self.tagchk(bad, range(vG, vG + 20), sSt, first=True)
        I(f"v_and_b32 {v(bad)}, v0, {v(bad)}")
        I(f"v_cmp_ne_u32 vcc, 0, {v(bad)}")
        I("s_cmp_lg_u32 vcc_lo, 0")
        if not self.opt.get('noq0'): I(f"s_cbranch_scc1 {r0}")
        I(f"{k0}:")
        sub = Gen(); sub.g5_issue_data(vQ0)
        self.cold.append([f"{p0}:", "s_sleep 8"] + [x.text for x in sub.a.L] + ["s_waitcnt vmcnt(0)", f"s_branch {c0}"])
        self.retry(r0, p0, k0)
        for p in range(1, 5):
            I(f"v_pk_add_f32 {vr(vG,2)}, {vr(vG,2)}, {vr(vG+4*p,2)}"); I(f"v_pk_add_f32 {vr(vG+2,2)}, {vr(vG+2,2)}, {vr(vG+4*p+2,2)}")
        I(f"v_cvt_pk_bf16_f32 {v(vT+6)}, {v(vG)}, {v(vG+2)}")
        I(f"v_cvt_pk_bf16_f32 {v(vT+7)}, {v(vG+1)}, {v(vG+3)}")
        I(f"ds_write2_b32 {v(vQLw)}, {v(vT+6)}, {v(vT+7)} offset0:0 offset1:8")
        I(f"{join}:")
        I("s_waitcnt lgkmcnt(0)"); I("s_barrier")
    def a_input(self):
        I = self.I
        join = self.lab("ai_j")
        p0, r0, k0 = (self.lab(x) for x in ("ai_p", "ai_r", "ai_k"))
        p1, r1, k1 = (self.lab(x) for x in ("ai_p", "ai_r", "ai_k"))
        I(f"s_cmp_lg_u32 s{sW}, 0"); I(f"s_cbranch_scc1 {p1}")
        I(f"{p0}:")
        self.g5(vGA, vGAS)
        I(f"v_cvt_pk_bf16_f32 {v(vT+6)}, {v(vT)}, {v(vT+2)}")
        I(f"v_cvt_pk_bf16_f32 {v(vT+7)}, {v(vT+1)}, {v(vT+3)}")
        I(f"s_cbranch_vccnz {r0}")
        I(f"{k0}:")
        I(f"ds_write2_b32 {v(vQLw)}, {v(vT+6)}, {v(vT+7)} offset0:0 offset1:8")
        I(f"{join}:")
        I("s_waitcnt lgkmcnt(0)"); I("s_barrier")
        self.retry(r0, p0, k0)
        sub = Gen()
        sub.I(f"{p1}:")
        sub.g5_issue_stats(vGAS); sub.I("s_waitcnt vmcnt(0)")
        sub.g5_stats(vT + 11); sub.g5_var()
        sub.I(f"v_cmp_ne_u32 vcc, 0, {v(vT+11)}"); sub.I(f"s_cbranch_vccnz {r1}"); sub.I(f"{k1}:"); sub.I(f"s_branch {join}")
        self.cold.append([i.text for i in sub.a.L])
        self.retry(r1, p1, k1)

    def qk_softmax(self):
        I = self.I
        I(f"ds_read_b128 {vr(vA,4)}, {v(vQLr)}")
        I(f"ds_read_b128 {vr(vA+4,4)}, {v(vQLr)} offset:128")
        I(f"v_rsq_f32 {v(vKf)}, {v(vT+10)}")
        I(f"v_mul_f32 {v(vKf)}, s{sKs}, {v(vKf)}")
        I("s_waitcnt lgkmcnt(0)")
        F = lambda t: vS + 4 * t
        m = vT
        def add(t): I(f"v_add_f32 {v(F(t))}, {v(F(t))}, {v(F(t)+1)}")
        for t in range(8):
            I(f"v_smfmac_f32_16x16x64_bf16 {vr(F(t),4)}, {vr(vA,4)}, {ar(16*t,8)}, {v(vIdx)}")
            I(f"v_smfmac_f32_16x16x64_bf16 {vr(F(t),4)}, {vr(vA+4,4)}, {ar(16*t+8,8)}, {v(vIdx)}")
            if t >= 4: add(t - 4)
        I(f"v_max3_f32 {v(m)}, {v(F(0))}, {v(F(1))}, {v(F(2))}")
        add(4); add(5)
        I(f"v_max3_f32 {v(m)}, {v(m)}, {v(F(3))}, {v(F(4))}")
        add(6)
        I(f"v_max3_f32 {v(m)}, {v(m)}, {v(F(5))}, {v(F(6))}")
        add(7)
        I(f"v_max_f32 {v(m)}, {v(m)}, {v(F(7))}")
        mv = [(0, 2, 2), (1, 3, 2), (0, 4, 4), (1, 5, 4), (0, 6, 8), (1, 7, 8)]
        for q, k in enumerate((8, 4, 2, 1)):
            for (d, s_, msk) in mv[2 * q:2 * q + 2]:
                I(f"v_mov_b32_dpp {v(F(d))}, {v(F(s_))} quad_perm:[0,1,2,3] row_mask:{msk:#x} bank_mask:0xf")
            I(f"v_max_f32_dpp {v(m)}, {v(m)}, {v(m)} row_ror:{k} {DPPALL}")
        I(f"v_mul_f32 {v(vMk)}, {v(m)}, {v(vKf)}")
        I(f"v_fma_f32 {v(vT+1)}, {v(F(0))}, {v(vKf)}, -{v(vMk)}")
        I(f"v_fma_f32 {v(vT+2)}, {v(F(1))}, {v(vKf)}, -{v(vMk)}")
        I(f"v_exp_f32 {v(vT+1)}, {v(vT+1)}")
        I(f"v_exp_f32 {v(vT+2)}, {v(vT+2)}")
        I(f"ds_write_b32 {v(vMLw)}, {v(vMk)}")
        I(f"v_cvt_pk_bf16_f32 {v(vT+3)}, {v(vT+1)}, {v(vT+2)}")
        I(f"ds_write_b32 {v(vPLw)}, {v(vT+3)}")
        I(f"ds_read_b128 {vr(vA,4)}, {v(vPLr)}")
        I(f"ds_read_b128 {vr(vA+4,4)}, {v(vPLr)} offset:128")
        I(f"v_add_f32 {v(vPs)}, {v(vT+1)}, {v(vT+2)}")
        for k in (8, 4, 2, 1):
            I(f"v_add_f32_dpp {v(vPs)}, {v(vPs)}, {v(vPs)} row_ror:{k} {DPPALL}")
    def factor_ops(self):
        g = []
        g.append(["s_barrier", f"ds_read_b128 {vr(vT+4,4)}, {v(vCst)} offset:{ML-XL}"])
        g.append([f"v_add_f32_dpp {v(vPs)}, {v(vPs)}, {v(vPs)} row_bcast:15 row_mask:0xa bank_mask:0xf"])
        g.append([f"v_add_f32_dpp {v(vPs)}, {v(vPs)}, {v(vPs)} row_bcast:31 row_mask:0xc bank_mask:0xf"])
        g.append(["s_waitcnt lgkmcnt(0)", f"v_max3_f32 {v(vT+4)}, {v(vT+4)}, {v(vT+5)}, {v(vT+6)}"])
        g.append([f"v_max_f32 {v(vT+4)}, {v(vT+4)}, {v(vT+7)}"])
        g.append([f"v_sub_f32 {v(vF)}, {v(vMk)}, {v(vT+4)}", f"v_mov_b32 {v(vMk)}, {v(vT+4)}"])
        g.append([f"v_exp_f32 {v(vF)}, {v(vF)}"])
        g.append([f"v_mul_f32 {v(vPs)}, {v(vPs)}, {v(vF)}", f"ds_write_b32 {v(vLLw)}, {v(vPs)}"])
        return g
    def pv(self, e, sg):
        self.I(f"v_smfmac_f32_16x16x64_bf16 {vr(vO+4*e,4)}, {vr(vA+4*sg,4)}, {ar(128+16*e+8*sg,8)}, {v(vIdx)}")
    def o_compact(self, e):
        self.I(f"v_add_f32_dpp {v(vT+8+(e>>2))}, {v(vO+4*e)}, {v(vO+4*e+1)} quad_perm:[0,1,2,3] row_mask:{1<<(e&3):#x} bank_mask:0xf")
    def a_end(self):
        I = self.I
        I(f"v_mul_f32 {v(vT+8)}, {v(vT+8)}, {v(vF)}")
        I(f"v_mul_f32 {v(vT+9)}, {v(vT+9)}, {v(vF)}")
        I(f"ds_write2_b32 {v(vOLw)}, {v(vT+8)}, {v(vT+9)} offset0:0 offset1:64")
        w1 = self.lab("ae1"); done = self.lab("aed")
        I(f"s_cmp_lg_u32 s{sW}, 0")
        I("s_waitcnt lgkmcnt(0)"); I("s_barrier")
        I(f"s_cbranch_scc1 {w1}")
        for w in range(4):
            I(f"ds_read_b64 {vr(vT+2*w,2)}, {v(vOLr)} offset:{w*512}")
        I("s_waitcnt lgkmcnt(2)")
        I(f"v_pk_add_f32 {vr(vT,2)}, {vr(vT,2)}, {vr(vT+2,2)}")
        I("s_waitcnt lgkmcnt(0)")
        I(f"v_pk_add_f32 {vr(vT+4,2)}, {vr(vT+4,2)}, {vr(vT+6,2)}")
        I(f"v_pk_add_f32 {vr(vT,2)}, {vr(vT,2)}, {vr(vT+4,2)}")
        I(f"v_cvt_pk_bf16_f32 {v(vT)}, {v(vT)}, {v(vT+1)}")
        I(f"v_min_u32 {v(vT)}, -2, {v(vT)}")
        self.pub_local([f"buffer_store_dword {v(vT)}, {v(vPubA)}, {srd(rGR)}, s{sMA} offen"])
        I(f"s_branch {done}")
        I(f"{w1}:")
        I(f"s_cmp_lg_u32 s{sW}, 1"); I(f"s_cbranch_scc1 {done}")
        I(f"ds_read_b128 {vr(vT+4,4)}, {v(vCst)} offset:{LL-XL}")
        I(f"v_mov_b32 {v(vT)}, {v(vMk)}"); I(f"v_mov_b32 {v(vT+1)}, s{sTag}"); I(f"v_mov_b32 {v(vT+3)}, s{sTag}")
        I("s_waitcnt lgkmcnt(0)")
        I(f"v_pk_add_f32 {vr(vT+4,2)}, {vr(vT+4,2)}, {vr(vT+6,2)}")
        I(f"v_add_f32 {v(vT+2)}, {v(vT+4)}, {v(vT+5)}")
        self.pub_local([f"buffer_store_dwordx4 {vr(vT,4)}, {v(vPubAS)}, {srd(rGR)}, s{sMAS} offen"])
        I(f"{done}:")

    def od_finish(self, rl, smb):
        I = self.I
        done = self.lab("odf")
        I(f"s_cmp_lg_u32 s{sW}, 0")
        I("s_waitcnt lgkmcnt(0)"); I("s_barrier")
        I(f"s_cbranch_scc1 {done}")
        for w in range(4):
            I(f"ds_read_b128 {vr(vT+4*w,4)}, {v(vRLr)} offset:{rl-RLO+w*1024}")
        I("s_waitcnt lgkmcnt(2)")
        I(f"v_pk_add_f32 {vr(vT,2)}, {vr(vT,2)}, {vr(vT+4,2)}")
        I(f"v_pk_add_f32 {vr(vT+2,2)}, {vr(vT+2,2)}, {vr(vT+6,2)}")
        I("s_waitcnt lgkmcnt(0)")
        I(f"v_pk_add_f32 {vr(vT+8,2)}, {vr(vT+8,2)}, {vr(vT+12,2)}")
        I(f"v_pk_add_f32 {vr(vT+10,2)}, {vr(vT+10,2)}, {vr(vT+14,2)}")
        I(f"v_pk_add_f32 {vr(vT,2)}, {vr(vT,2)}, {vr(vT+8,2)}")
        I(f"v_pk_add_f32 {vr(vT+2,2)}, {vr(vT+2,2)}, {vr(vT+10,2)}")
        self.settag(range(vT, vT + 4), sTag)
        I(f"buffer_store_dwordx4 {vr(vT,4)}, {v(vPubO)}, {srd(rWS)}, s{smb} offen sc1")
        I(f"{done}:")

    def o_stage(self):
        I = self.I
        poll = self.lab("o"); rt = self.lab("or"); ok = self.lab("ok")
        self.zero(range(vS, vS + 16))
        I(f"{poll}:")
        I(f"buffer_load_dwordx4 {vr(vA,4)}, {v(vOA)}, {srd(rGR)}, s{sMA} offen sc1")
        I(f"buffer_load_dwordx4 {vr(vA+4,4)}, {v(vOA)}, {srd(rGR)}, s{sMA} offen offset:128 sc1")
        I(f"buffer_load_dwordx4 {vr(vG,4)}, {v(vOS)}, {srd(rGR)}, s{sMAS} offen sc1")
        I(f"buffer_load_dwordx4 {vr(vG+4,4)}, {v(vOS)}, {srd(rGR)}, s{sMAS} offen offset:16 sc1")
        I("s_waitcnt vmcnt(3)")
        I(f"v_max3_u32 {v(vT)}, {v(vA)}, {v(vA+1)}, {v(vA+2)}")
        I("s_waitcnt vmcnt(2)")
        I(f"v_max3_u32 {v(vT)}, {v(vT)}, {v(vA+3)}, {v(vA+4)}")
        I(f"v_max3_u32 {v(vT+1)}, {v(vA+5)}, {v(vA+6)}, {v(vA+7)}")
        I(f"v_max_u32 {v(vT)}, {v(vT)}, {v(vT+1)}")
        I(f"v_cmp_eq_u32 {sp(sAny)}, -1, {v(vT)}")
        I("s_waitcnt vmcnt(0)")
        self.tagchk(vT + 1, (vG + 1, vG + 3, vG + 5, vG + 7), sTag, first=True)
        I(f"v_cmp_ne_u32 vcc, 0, {v(vT+1)}")
        I(f"s_or_b64 {sp(sAny)}, {sp(sAny)}, vcc")
        I(f"s_cbranch_scc1 {rt}")
        I(f"{ok}:")
        self.retry(rt, poll, ok)
        M0_, L0, M1_, L1 = vG, vG + 2, vG + 4, vG + 6
        w0, w1, mx = vT + 8, vT + 9, vT + 10
        side = [[f"v_max_f32 {v(mx)}, {v(M0_)}, {v(M1_)}"],
                [f"v_sub_f32 {v(w0)}, {v(M0_)}, {v(mx)}", f"v_sub_f32 {v(w1)}, {v(M1_)}, {v(mx)}"],
                [f"v_exp_f32 {v(w0)}, {v(w0)}"], [f"v_exp_f32 {v(w1)}, {v(w1)}"],
                [f"v_mul_f32 {v(mx)}, {v(L0)}, {v(w0)}", f"v_fmac_f32 {v(mx)}, {v(L1)}, {v(w1)}"],
                [f"v_rcp_f32 {v(mx)}, {v(mx)}"], [],
                [f"v_mul_f32 {v(w0)}, {v(w0)}, {v(mx)}", f"v_mul_f32 {v(w1)}, {v(w1)}, {v(mx)}"]]
        k = 0
        for t in range(4):
            for sg in range(2):
                I(f"v_smfmac_f32_16x16x64_bf16 {vr(vS+4*t,4)}, {vr(vA+4*sg,4)}, {vr(WO+16*t+8*sg,8)}, {v(vIdx)}")
                for x in side[k]: I(x)
                k += 1
        for t in range(4):
            a = vS + 4 * t
            I(f"v_add_f32 {v(a)}, {v(a)}, {v(a+1)}")
            I(f"v_add_f32 {v(a+2)}, {v(a+2)}, {v(a+3)}")
            I(f"v_mul_f32 {v(a)}, {v(a)}, {v(w0)}")
            I(f"v_fmac_f32 {v(a)}, {v(a+2)}, {v(w1)}")
            I(f"ds_write_b32 {v(vRLw)}, {v(a)} offset:{t*64}")
        self.od_finish(RLO, sMO)

    def d_stage(self):
        I = self.I
        poll = self.lab("d"); rt = self.lab("dr"); ok = self.lab("dk"); skip = self.lab("ds")
        self.zero(range(vS, vS + 16))
        I(f"s_cmp_eq_u32 s{sHasG}, 0"); I(f"s_cbranch_scc1 {skip}")
        I(f"{poll}:")
        I(f"buffer_load_dwordx4 {vr(vA,4)}, {v(vDA)}, {srd(rGR)}, s{sMH} offen sc1")
        I("s_waitcnt vmcnt(0)")
        I(f"v_max3_u32 {v(vT)}, {v(vA)}, {v(vA+1)}, {v(vA+2)}")
        I(f"v_max_u32 {v(vT)}, {v(vT)}, {v(vA+3)}")
        I(f"v_cmp_eq_u32 vcc, -1, {v(vT)}")
        I(f"s_cbranch_vccnz {rt}")
        I(f"{ok}:")
        self.retry(rt, poll, ok, None)
        for t in range(4):
            I(f"v_smfmac_f32_16x16x64_bf16 {vr(vS+4*t,4)}, {vr(vA,4)}, {vr(WD+8*t,8)}, {v(vIdx)}")
        I(f"{skip}:")
        for t in range(4):
            a = vS + 4 * t
            I(f"v_add_f32 {v(a)}, {v(a)}, {v(a+1)}")
            I(f"ds_write_b32 {v(vRLw)}, {v(a)} offset:{RLD-RLO+t*64}")
        self.od_finish(RLD, sMD)

    def h_stage(self):
        I = self.I
        poll = self.lab("h"); rt = self.lab("hr"); ok = self.lab("hk")
        I(f"{poll}:")
        self.g5(vGH, vGHS)
        I(f"s_cbranch_vccnz {rt}")
        I(f"{ok}:")
        self.retry(rt, poll, ok)
        I(f"v_rcp_f32 {v(vT+10)}, {v(vT+10)}")
        I(f"v_max_f32 {v(vT)}, 0, {v(vT)}")
        I(f"v_max_f32 {v(vT+2)}, 0, {v(vT+2)}")
        I(f"v_mul_f32 {v(vT+1)}, {v(vT+1)}, {v(vT+10)}")
        I(f"v_mul_f32 {v(vT+3)}, {v(vT+3)}, {v(vT+10)}")
        I(f"v_mul_f32 {v(vT)}, {v(vT)}, {v(vT+1)}")
        I(f"v_mul_f32 {v(vT+2)}, {v(vT+2)}, {v(vT+3)}")
        I(f"v_cvt_pk_bf16_f32 {v(vT)}, {v(vT)}, {v(vT+2)}")
        I(f"v_min_u32 {v(vT)}, -2, {v(vT)}")
        self.pub_local([f"buffer_store_dword {v(vT)}, {v(vPubH)}, {srd(rGR)}, s{sMH} offen"])

    def make_srd(self, r, ptr, off_s, nrec):
        I = self.I
        I(f"s_add_u32 s{r}, s{ptr}, s{off_s}"); I(f"s_addc_u32 s{r+1}, s{ptr+1}, 0")
        I(f"s_mov_b32 s{r+2}, {nrec}"); I(f"s_mov_b32 s{r+3}, 0x20000")

    def build(self):
        I = self.I; opt = self.opt
        DEPTH = opt.get('depth', 14)
        t0, t1, t2, t3, t4, t5, t6, t7 = range(vT, vT + 8)
        vN, vC, vOob, vSp = 251, 252, 253, 254
        I(f"{NAME}_kernel:")
        if self.prof: I("s_memrealtime s[94:95]")
        I("s_load_dwordx16 s[16:31], s[0:1], 0"); I("s_load_dwordx8 s[32:39], s[0:1], 64")
        I("s_cmp_ge_u32 s2, 256"); I("s_cbranch_scc1 L_end")
        I(f"s_getpc_b64 {sp(sAny)}")
        I("L_pc:")
        I(f"v_lshlrev_b32 {v(t5)}, 4, v0"); I(f"s_lshr_b32 s{sT2}, s2, 3"); I(f"s_lshl_b32 s{sT2}, s{sT2}, 12")
        I(f"v_add_u32 {v(t4)}, s{sT2}, {v(t5)}")
        I(f"v_lshrrev_b32 {v(t0)}, 6, v0")
        I(f"s_cmp_ge_u32 s{sT2}, L_codeend-L_pc-4095"); I("s_cbranch_scc1 L_nopf")
        I(f"global_load_dwordx4 {vr(vG,4)}, {v(t4)}, {sp(sAny)}")
        I("L_nopf:")
        I(f"v_readfirstlane_b32 s{sW}, {v(t0)}"); I(f"v_and_b32 {v(vL)}, 63, v0")
        I(f"s_and_b32 s{sX}, s2, 7"); I(f"s_lshr_b32 s{sHH}, s2, 6"); I(f"s_bfe_u32 s{sSub}, s2, 0x30003")
        I(f"s_lshl_b32 s{sH}, s{sX}, 2"); I(f"s_add_u32 s{sH}, s{sH}, s{sHH}")
        I(f"s_lshl_b32 s{sRing}, s{sW}, 15")
        I(f"s_lshr_b32 s{sT0}, s{sSub}, 1"); I(f"s_lshl_b32 s{sT0}, s{sT0}, 5"); I(f"s_add_u32 s{sT0}, s{sT0}, s{sH}")
        I(f"s_lshl_b32 s{sT0}, s{sT0}, 3"); I(f"s_and_b32 s{sT1}, s{sSub}, 1"); I(f"s_add_u32 s{sT0}, s{sT0}, s{sT1}")
        I(f"s_add_u32 s{sT0}, s{sT0}, 6"); I(f"s_lshl_b32 s{sT0}, s{sT0}, 17")
        I(f"v_and_b32 {v(vN)}, 15, v0"); I(f"v_bfe_u32 {v(vC)}, v0, 4, 2")
        I(f"v_bfe_u32 {v(t3)}, v0, 4, 1"); I(f"v_bfe_u32 {v(t4)}, v0, 5, 1"); I(f"v_lshl_or_b32 {v(t3)}, {v(t3)}, 1, {v(t4)}")
        I(f"v_xor_b32 {v(t3)}, {v(t3)}, {v(vN)}"); I(f"v_lshlrev_b32 {v(t3)}, 4, {v(t3)}")
        I(f"v_lshl_or_b32 {v(vKV)}, {v(vC)}, 8, {v(t3)}")
        for k in (1, 2, 3): I(f"v_xor_b32 {v(vKV+k)}, {64*k}, {v(vKV)}")
        I(f"v_lshlrev_b32 {v(t3)}, 1, {v(vC)}"); I(f"v_xor_b32 {v(t3)}, {v(t3)}, {v(vN)}"); I(f"v_lshlrev_b32 {v(t3)}, 4, {v(t3)}")
        I(f"v_lshl_or_b32 {v(vTo)}, {v(vC)}, 13, {v(t3)}"); I(f"v_xor_b32 {v(vTo+1)}, 128, {v(vTo)}")
        I(f"s_lshl_b32 s{sT1}, s{sSub}, 20"); I(f"s_lshl_b32 s{sT2}, s{sH}, 8"); I(f"s_add_u32 s{sT1}, s{sT1}, s{sT2}")
        I(f"s_add_u32 m0, s{sRing}, {24*1024}"); I(f"s_lshl_b32 s{sOff}, s{sW}, 18")
        I(f"s_mov_b32 s{rK+2}, 131072"); I(f"s_mov_b32 s{rK+3}, 0x20000")
        I(f"s_mov_b32 s{rT+2}, {0 if opt.get('nowq') else 127*8192+256}"); I(f"s_mov_b32 s{rT+3}, 0x20000")
        I(f"s_mov_b32 s{rWS+2}, {WS_USED}"); I(f"s_mov_b32 s{rWS+3}, 0x20000")
        I(f"s_getreg_b32 s{sXcc}, hwreg(HW_REG_XCC_ID, 0, 4)")
        I(f"s_mul_i32 s{rGR}, s{sX}, {GSTRIDE}"); I(f"s_mov_b32 s{rGR+2}, {GSTRIDE}"); I(f"s_mov_b32 s{rGR+3}, 0x20000")
        I(f"v_lshlrev_b32 {v(t6)}, 4, {v(vL)}")
        if self.prof: I(f"s_mov_b32 s{sStamp}, 0"); I(f"v_mov_b32 {v(vStampV)}, 0")
        I(f"s_cmp_lt_u32 s{sSub}, 5"); I(f"s_cselect_b32 s{sRole}, 0, 1")
        I("s_waitcnt lgkmcnt(0)")
        if self.prof: I(f"v_writelane_b32 {v(vStampV)}, s94, 63")
        self.stamp()
        I(f"s_add_u32 s{rK}, s{pK}, s{sT0}"); I(f"s_addc_u32 s{rK+1}, s{pK+1}, 0")
        I(f"s_mov_b32 s{rWS}, s{pWS}"); I(f"s_mov_b32 s{rWS+1}, s{pWS+1}")
        I(f"s_add_u32 s{rGR}, s{pWS}, s{rGR}"); I(f"s_addc_u32 s{rGR+1}, s{pWS+1}, 0")
        def flag():
            if opt.get('noflag'): return
            I(f"s_cmp_lg_u32 s{sW}, 3"); nf = self.lab("nf"); I(f"s_cbranch_scc1 {nf}")
            I(f"s_lshr_b32 s{sT3}, s2, 3"); I(f"s_lshl_b32 s{sT3}, s{sT3}, 7"); I(f"s_add_u32 s{sT3}, s{sT3}, {MB_X}")
            I(f"v_mov_b32 {v(vG+20)}, s{sXcc}"); I(f"v_mov_b32 {v(vG+21)}, s{sTag}"); I(f"v_mov_b32 {v(vG+22)}, s{sXcc}"); I(f"v_mov_b32 {v(vG+23)}, s{sTag}")
            I(f"v_lshlrev_b32 {v(vG+24)}, 4, {v(vL)}")
            I("s_mov_b64 exec, 0xff")
            I(f"buffer_store_dwordx4 {vr(vG+20,4)}, {v(vG+24)}, {srd(rGR)}, s{sT3} offen sc1")
            I("s_mov_b64 exec, -1")
            I(f"{nf}:")
        def touch_v():
            if opt.get('notouchv'): return
            nf = self.lab("tv")
            I(f"s_cmp_lg_u32 s{sW}, 2"); I(f"s_cbranch_scc1 {nf}")
            I(f"v_and_b32 {v(t5)}, 1, {v(vL)}"); I(f"v_lshl_add_u32 {v(t5)}, {v(t5)}, 16, s{sT0}")
            I(f"global_load_dword {v(vG+26)}, {v(t5)}, {sp(pV)} nt")
            I(f"{nf}:")
        def common():
            I(f"s_add_u32 s{sAny}, s{pWS}, {MB_E}"); I(f"s_addc_u32 s{sAny+1}, s{pWS+1}, 0")
            I(f"s_load_dword s{sTag}, {sp(sAny)}, 0")
            self.make_srd(rV, pV, sT0, 131072)
            I(f"v_mov_b32 {v(vOob)}, {OOB:#x}"); I(f"v_mov_b32 {v(vCst)}, {XL}")
            I(f"s_mov_b32 s{sMR}, {MB_R}"); I(f"s_mov_b32 s{sCnt}, 0"); I("v_mov_b32 v0, 0xff")
            I(f"s_mov_b32 s{sC640}, 0x3acccccd")
            I(f"s_mov_b32 s{sEps}, 0x3727c5ac")
            I(f"v_and_b32 {v(t3)}, 1, {v(vL)}"); I(f"v_mul_u32_u24 {v(vIdx)}, 0xaaaa, {v(t3)}"); I(f"v_add_u32 {v(vIdx)}, 0x4444, {v(vIdx)}")
            I(f"v_lshlrev_b32 {v(vSp)}, 4, {v(t3)}"); I(f"v_lshl_or_b32 {v(vSp)}, {v(vC)}, 5, {v(vSp)}")
        if opt.get('pre'):
            nl = (GSTRIDE - MB_AS0) // 128
            I(f"s_lshr_b32 s{sT2}, s2, 3"); I(f"s_lshl_b32 s{sT2}, s{sT2}, 2"); I(f"s_add_u32 s{sT2}, s{sT2}, s{sW}"); I(f"s_lshl_b32 s{sT2}, s{sT2}, 9")
            I(f"s_add_u32 s{sT2}, s{sT2}, {MB_AS0}"); I(f"v_and_b32 {v(t5)}, 3, {v(vL)}"); I(f"v_lshlrev_b32 {v(t5)}, 7, {v(t5)}")
            assert nl <= 512
            I(f"buffer_load_dword {v(vG+27)}, {v(t5)}, {srd(rGR)}, s{sT2} offen")
            if opt['pre'] >= 2:
                n2 = (MB_E - MB_O0) // 128
                assert n2 <= 4096
                I(f"s_lshl_b32 s{sT2}, s2, 2"); I(f"s_add_u32 s{sT2}, s{sT2}, s{sW}"); I(f"s_lshl_b32 s{sT2}, s{sT2}, 9"); I(f"s_add_u32 s{sT2}, s{sT2}, {MB_O0}")
                I(f"s_cmp_ge_u32 s{sT2}, {MB_E}"); I("s_cbranch_scc1 L_nopre")
                I(f"buffer_load_dword {v(vG+28)}, {v(t5)}, {srd(rWS)}, s{sT2} offen")
                I("L_nopre:")
        I(f"s_cmp_eq_u32 s{sRole}, {7 if opt.get('noqg') else 0}"); I("s_cbranch_scc1 L_q0")
        for i in range(4): self.item(i)
        I(f"s_mul_i32 s{sCB}, s{sHH}, 3"); I(f"s_add_u32 s{sCB}, s{sCB}, s{sSub}"); I(f"s_sub_u32 s{sCB}, s{sCB}, 5")
        touch_v()
        I(f"s_cmp_lt_u32 s{sCB}, {99 if opt.get('notouch') else 10}"); I("s_cbranch_scc1 L_notouch")
        assert Z2 <= 8 * 3072 and Z2 % 1024 == 0
        I(f"s_sub_u32 s{sT2}, s{sCB}, 10"); I(f"s_lshl_b32 s{sT2}, s{sT2}, 2"); I(f"s_add_u32 s{sT2}, s{sT2}, s{sW}"); I(f"s_mul_i32 s{sT2}, s{sT2}, 3072")
        for k in range(4): I(f"v_mov_b32 {v(vG+4+k)}, -1")
        I(f"s_mov_b32 s{rGR+2}, {Z2}")
        for k in range(3): I(f"buffer_store_dwordx4 {vr(vG+4,4)}, {v(t6)}, {srd(rGR)}, s{sT2} offen offset:{k*1024} sc1")
        I(f"s_mov_b32 s{rGR+2}, {GSTRIDE}")
        I(f"v_lshlrev_b32 {v(t5)}, 17, {v(vL)}")
        t1l = self.lab("tw"); t3l = self.lab("tw")
        I(f"s_cmp_eq_u32 s{sW}, 1"); I(f"s_cbranch_scc1 {t1l}"); I(f"s_cmp_eq_u32 s{sW}, 3"); I(f"s_cbranch_scc1 {t3l}"); I(f"s_cmp_eq_u32 s{sW}, 2"); I("s_cbranch_scc1 L_notouch")
        I(f"v_min_u32 {v(t7)}, {4096*1280-4}, {v(t5)}"); I(f"global_load_dword {v(vG+8)}, {v(t7)}, {sp(pWO)}")
        I(f"v_min_u32 {v(t7)}, {1728*1280-4}, {v(t5)}"); I(f"global_load_dword {v(vG+9)}, {v(t7)}, {sp(pWD)}")
        I("s_branch L_notouch")
        I(f"{t1l}:")
        I(f"v_min_u32 {v(t7)}, {640*3456-4}, {v(t5)}"); I(f"global_load_dword {v(vG+8)}, {v(t7)}, {sp(pWG)}"); I(f"global_load_dword {v(vG+9)}, {v(t7)}, {sp(pWU)}")
        I("s_branch L_notouch")
        I(f"{t3l}:")
        I(f"v_min_u32 {v(t7)}, {WS_USED-4}, {v(t5)}"); I(f"v_mov_b32 {v(t5)}, 0")
        I(f"global_load_dword {v(vG+8)}, {v(t7)}, {sp(pWS)}"); I(f"global_load_dword {v(vG+9)}, {v(t5)}, {sp(pOUT)}")
        I("L_notouch:")
        for i in range(4, 16): self.item(i)
        common()
        I("s_waitcnt vmcnt(12) lgkmcnt(0)"); I(f"s_add_u32 s{sTag}, s{sTag}, 1"); I(f"s_mov_b32 s{sSt}, s{sTag}"); I("s_barrier")
        flag()
        I("s_branch L_stream")
        I("L_q0:")
        I(f"s_add_u32 s{rT}, s{pWQ}, s{sT1}"); I(f"s_addc_u32 s{rT+1}, s{pWQ+1}, 0")
        I(f"s_mul_i32 s{sT2}, s{sW}, 1280"); I(f"v_add_u32 {v(t5)}, s{sT2}, {v(t6)}"); I(f"v_lshl_add_u32 {v(t7)}, {v(vL)}, 2, s{sT2}")
        if not opt.get('nox'): I(f"global_load_dwordx4 {vr(vG+4,4)}, {v(t5)}, {sp(pX)}"); I(f"global_load_dword {v(vG+8)}, {v(t7)}, {sp(pX)} offset:1024")
        I(f"v_and_b32 {v(t3)}, 31, {v(vL)}"); I(f"v_lshlrev_b32 {v(t3)}, 3, {v(t3)}"); I(f"v_lshl_or_b32 {v(t3)}, {v(t4)}, 2, {v(t3)}")
        I(f"s_lshl_b32 s{sT3}, s{sSub}, 8"); I(f"s_add_u32 s{sT2}, s{sT2}, s{sT3}")
        I(f"v_add_u32 {v(t3)}, s{sT2}, {v(t3)}")
        if not opt.get('nox'): I(f"global_load_dword {v(vXpk)}, {v(t3)}, {sp(pX)}")
        if opt.get('wqlin'):
            I(f"s_sub_u32 s{rT}, s{rK}, 0x40000"); I(f"s_subb_u32 s{rT+1}, s{rK+1}, 0"); I(f"s_lshl_b32 s{sOff}, s{sW}, 10")
            for ii in range(8): self.dma(vKV, rT, None, 4096)
        else:
          for ii in range(8):
            self.dma(vTo + ((ii >> 1) & 1), rT, None, 32768)
        self.vm = []
        for i in range(4): self.item(i)
        touch_v()
        common()
        I(f"s_lshl_b32 s{sT2}, s{sHH}, 2"); I(f"s_add_u32 s{sT2}, s{sT2}, s{sW}")
        I(f"s_mul_i32 s{sT3}, s{sT2}, 3200"); I(f"s_lshl_b32 s{sT1}, s{sSub}, 7"); I(f"s_add_u32 s{sT3}, s{sT3}, s{sT1}")
        I(f"v_mul_u32_u24 {v(t3)}, 640, {v(vC)}"); I(f"v_lshl_add_u32 {v(t4)}, {v(vN)}, 3, s{sT3}")
        I(f"v_add_u32 {v(vPub)}, {v(t3)}, {v(t4)}")
        I(f"v_lshrrev_b32 {v(t5)}, 5, {v(vL)}"); I(f"v_bfe_u32 {v(t3)}, {v(vL)}, 2, 3"); I(f"v_lshl_or_b32 {v(t3)}, {v(t3)}, 1, {v(t5)}")
        I(f"v_and_b32 {v(t5)}, 3, {v(vL)}"); I(f"v_lshl_or_b32 {v(t3)}, {v(t3)}, 2, {v(t5)}")
        I(f"s_mul_i32 s{sT3}, s{sW}, 272"); I(f"s_add_u32 s{sT3}, s{sT3}, {XL}"); I(f"v_lshl_add_u32 {v(vXLw)}, {v(t3)}, 2, s{sT3}")
        I(f"v_and_b32 {v(t5)}, 2, {v(vL)}"); I(f"v_cmp_eq_u32 vcc, 0, {v(t5)}"); I(f"v_lshrrev_b32 {v(t3)}, 2, {v(vN)}")
        I(f"v_mov_b32 {v(t6)}, 0x3f803f80"); I(f"v_lshl_add_u32 {v(t5)}, {v(vL)}, 2, {v(vCst)}")
        I(f"v_cndmask_b32 {v(t3)}, 4, {v(t3)}, vcc"); I(f"v_mul_u32_u24 {v(t3)}, 272, {v(t3)}"); I(f"v_add3_u32 {v(vXLr)}, {v(t3)}, {v(vSp)}, {v(vCst)}")
        I(f"ds_write_b32 {v(t5)}, {v(t6)} offset:{4*272}")
        wa = vG + 16
        I(f"v_bfe_u32 {v(t3)}, {v(vL)}, 1, 4"); I(f"s_lshl_b32 s{sT3}, s{sW}, 2"); I(f"v_xor_b32 {v(t3)}, s{sT3}, {v(t3)}")
        I(f"v_and_b32 {v(t4)}, 1, {v(vL)}"); I(f"v_lshlrev_b32 {v(t4)}, 3, {v(t4)}"); I(f"v_bfe_u32 {v(t0)}, {v(vL)}, 2, 2")
        I(f"v_lshl_add_u32 {v(t3)}, {v(t3)}, 4, {v(t4)}"); I(f"v_lshl_add_u32 {v(t3)}, {v(t0)}, 8, {v(t3)}"); I(f"v_lshl_add_u32 {v(t3)}, {v(vC)}, 11, {v(t3)}")
        I(f"v_add_u32 {v(wa)}, {24*1024}, {v(t3)}"); I(f"v_xor_b32 {v(wa+1)}, 32, {v(wa)}")
        I(f"v_add_u32 {v(wa+2)}, 0x10000, {v(wa)}"); I(f"v_add_u32 {v(wa+3)}, 0x10000, {v(wa+1)}")
        self.zero(range(vS, vS + 8))
        for i in range(4, 8): self.item(i)
        I("s_waitcnt vmcnt(16)")
        I(f"v_mov_b32 {v(t0)}, 0"); I(f"v_mov_b32 {v(t1)}, 0")
        for k in range(5):
            I(f"v_dot2_f32_bf16 {v(t0)}, {v(vG+4+k)}, {v(t6)}, {v(t0)}"); I(f"v_dot2_f32_bf16 {v(t1)}, {v(vG+4+k)}, {v(vG+4+k)}, {v(t1)}")
        self.x_unpack()
        I(f"v_permlane32_swap_b32 {v(t0)}, {v(t1)}")
        I(f"v_add_f32 {v(t0)}, {v(t0)}, {v(t1)}")
        for k in (8, 4, 2, 1):
            I(f"v_add_f32_dpp {v(t0)}, {v(t0)}, {v(t0)} row_ror:{k} {DPPALL}")
        I(f"v_add_f32_dpp {v(t0)}, {v(t0)}, {v(t0)} row_bcast:15 row_mask:0xa bank_mask:0xf")
        I(f"v_mul_f32 {v(t0)}, s{sC640}, {v(t0)}")
        I(f"v_readlane_b32 s{sT2}, {v(t0)}, 31"); I(f"v_readlane_b32 s{sT3}, {v(t0)}, 63")
        I(f"v_mov_b32 {v(vT+8)}, s{sT2}"); I(f"v_mov_b32 {v(vT+9)}, s{sT3}")
        self.g5_var()
        I(f"v_rsq_f32 {v(vT+10)}, {v(vT+10)}")
        I(f"v_sub_f32 {v(t0)}, {v(vXres)}, {v(vT+8)}"); I(f"v_sub_f32 {v(t1)}, {v(vXres+1)}, {v(vT+8)}")
        I(f"v_mul_f32 {v(t0)}, {v(t0)}, {v(vT+10)}"); I(f"v_mul_f32 {v(t1)}, {v(t1)}, {v(vT+10)}")
        I(f"v_cvt_pk_bf16_f32 {v(t0)}, {v(t0)}, {v(t1)}")
        I(f"ds_write_b32 {v(vXLw)}, {v(t0)}")
        for i in range(8, 12): self.item(i)
        I("s_waitcnt vmcnt(12) lgkmcnt(0)"); I("s_barrier")
        for tt in range(2):
            for kk in range(4):
                for rd in range(2):
                    I(f"ds_read_b64_tr_b16 {vr(WQ+16*tt+4*kk+2*rd,2)}, {v(wa+tt+2*(kk>>1))} offset:{(kk&1)*32768+rd*1024}")
        I(f"ds_read_b128 {vr(vA,4)}, {v(vXLr)}"); I(f"ds_read_b128 {vr(vA+4,4)}, {v(vXLr)} offset:128")
        for i in range(12, 14): self.item(i)
        I(f"s_add_u32 s{sTag}, s{sTag}, 1"); I(f"s_mov_b32 s{sSt}, s{sTag}")
        flag()
        I("s_waitcnt lgkmcnt(0)")
        for sg in range(2):
            for tt in range(2):
                I(f"v_smfmac_f32_16x16x64_bf16 {vr(vS+4*tt,4)}, {vr(vA+4*sg,4)}, {vr(WQ+16*tt+8*sg,8)}, {v(vIdx)}")
        I("s_barrier")
        I(f"v_and_b32 {v(t5)}, 1, {v(vL)}"); I(f"v_cmp_eq_u32 vcc, 0, {v(t5)}")
        I(f"v_add_f32 {v(vT)}, {v(vS)}, {v(vS+1)}"); I(f"v_add_f32 {v(vT+1)}, {v(vS+4)}, {v(vS+5)}")
        I(f"v_cndmask_b32 {v(t5)}, {v(vOob)}, {v(vPub)}, vcc")
        self.settag((vT, vT + 1), sSt)
        I(f"v_mov_b32_dpp {v(vT+2)}, {v(vT)} quad_perm:[1,1,3,3] {DPPALL}"); I(f"v_mov_b32_dpp {v(vT+3)}, {v(vT+1)} quad_perm:[1,1,3,3] {DPPALL}")
        if not opt.get('noq0'): I(f"buffer_store_dwordx4 {vr(vT,4)}, {v(t5)}, {srd(rGR)}, s{sMR} offen" + ("" if opt.get('plainq0') else " sc1"))
        for i in range(14, 16): self.item(i)
        I("L_stream:")
        self.stamp()

        def su_k():
            I(f"v_and_b32 {v(t3)}, 1, {v(vN)}"); I(f"v_bfe_u32 {v(t4)}, {v(vN)}, 1, 1"); I(f"v_lshl_or_b32 {v(t3)}, {v(t3)}, 1, {v(t4)}")
            I(f"v_and_or_b32 {v(t3)}, {v(vN)}, 12, {v(t3)}"); I(f"v_xor_b32 {v(t3)}, {v(t3)}, {v(vC)}")
            I(f"v_lshl_add_u32 {v(t3)}, {v(t3)}, 4, s{sRing}"); I(f"v_lshl_add_u32 {v(vRK)}, {v(vN)}, 8, {v(t3)}")
            for k in (1, 2, 3): I(f"v_xor_b32 {v(vRK+k)}, {64*k}, {v(vRK)}")
        def su_const():
            I(f"s_mov_b32 s{sFast}, 0"); I(f"s_mov_b32 s{sLayer}, 0")
            I(f"s_mov_b32 s{sKs}, 0x3e0293ee")
            I(f"s_mov_b32 s{sMA}, {MB_A0}"); I(f"s_mov_b32 s{sMAS}, {MB_AS0}"); I(f"s_mov_b32 s{sMO}, {MB_O0}")
            I(f"s_mov_b32 s{sMD}, {MB_D0}"); I(f"s_mov_b32 s{sMH}, {MB_H0}"); I(f"s_mov_b32 s{sMF}, {MB_F}")
            I(f"v_and_b32 {v(vFa)}, 31, {v(vL)}"); I(f"v_lshlrev_b32 {v(vFa)}, 7, {v(vFa)}"); I(f"v_add_u32 {v(vFa)}, {MB_X}, {v(vFa)}")
            self.zero([vS + 4 * t + k for t in range(16) for k in range(2)])
        def su_att():
            I(f"v_add_u32 {v(vQLr)}, {QL}, {v(vSp)}")
            I(f"s_lshl_b32 s{sT1}, s{sW}, 8"); I(f"s_add_u32 s{sT1}, s{sT1}, {PL}")
            I(f"v_add_u32 {v(vPLr)}, s{sT1}, {v(vSp)}")
            I(f"v_and_b32 {v(t3)}, 1, {v(vL)}"); I(f"v_and_b32 {v(t4)}, 56, {v(vL)}"); I(f"v_lshl_or_b32 {v(t4)}, {v(t3)}, 2, {v(t4)}")
            I(f"v_bfe_u32 {v(t5)}, {v(vL)}, 1, 2"); I(f"v_or_b32 {v(t4)}, {v(t4)}, {v(t5)}")
            I(f"v_lshl_add_u32 {v(vPLw)}, {v(t4)}, 2, s{sT1}")
            I(f"s_lshl_b32 s{sT1}, s{sHH}, 3"); I(f"s_add_u32 s{sT1}, s{sT1}, s{sSub}"); I(f"s_lshl_b32 s{sT1}, s{sT1}, 8")
            I(f"v_lshl_add_u32 {v(vPubA)}, {v(t4)}, 2, s{sT1}")
            I(f"v_and_b32 {v(t5)}, 7, {v(t4)}"); I(f"v_bfe_u32 {v(t0)}, {v(vL)}, 3, 2"); I(f"v_lshl_or_b32 {v(t5)}, {v(t0)}, 4, {v(t5)}")
            I(f"v_cmp_gt_u32 vcc, 32, {v(vL)}")
            I(f"v_lshlrev_b32 {v(t5)}, 2, {v(t5)}"); I(f"v_add_u32 {v(t5)}, {QL}, {v(t5)}"); I(f"v_mov_b32 {v(vQLw)}, {JUNK}")
            I(f"v_cndmask_b32 {v(vQLw)}, {v(vQLw)}, {v(t5)}, vcc")
            I(f"s_lshl_b32 s{sT1}, s{sHH}, 9"); I(f"s_lshl_b32 s{sT3}, s{sSub}, 5"); I(f"s_add_u32 s{sT1}, s{sT1}, s{sT3}")
            I(f"v_and_b32 {v(t5)}, 7, {v(t4)}"); I(f"v_lshl_add_u32 {v(t5)}, {v(t5)}, 2, s{sT1}"); I(f"v_lshl_add_u32 {v(t5)}, {v(t0)}, 7, {v(t5)}")
            I(f"v_cndmask_b32 {v(vPubH)}, {v(vOob)}, {v(t5)}, vcc")
            I(f"s_lshr_b32 s{sT1}, s{sSub}, 1"); I(f"v_mov_b32 {v(t5)}, s{sT1}"); I(f"v_cndmask_b32 {v(t5)}, 4, {v(t5)}, vcc")
            I(f"v_mad_u32_u24 {v(t5)}, {v(t0)}, 5, {v(t5)}"); I(f"v_mul_u32_u24 {v(t5)}, 640, {v(t5)}")
            I(f"v_and_b32 {v(t3)}, 7, {v(vL)}"); I(f"s_mul_i32 s{sT3}, s{sHH}, 12800"); I(f"v_lshl_add_u32 {v(t3)}, {v(t3)}, 4, s{sT3}")
            I(f"v_add_u32 {v(vGA)}, {v(t5)}, {v(t3)}")
            I(f"v_cndmask_b32 {v(vQ0)}, {v(vOob)}, {v(vGA)}, vcc")
            I(f"v_cndmask_b32 {v(t5)}, 4, {v(t0)}, vcc"); I(f"v_mul_u32_u24 {v(t5)}, 640, {v(t5)}")
            I(f"s_mul_i32 s{sT3}, s{sSub}, 3200"); I(f"v_add3_u32 {v(vGH)}, {v(t5)}, {v(t3)}, s{sT3}")
            I(f"s_lshl_b32 s{sT3}, s{sHH}, 9"); I(f"s_add_u32 s{sT3}, s{sT3}, {MB_S}"); I(f"v_lshrrev_b32 {v(t5)}, 5, {v(vL)}"); I(f"v_lshl_add_u32 {v(t5)}, {v(t5)}, 6, s{sT3}")
            I(f"v_lshl_add_u32 {v(vGHS)}, {v(t0)}, 7, {v(t5)}")
            I(f"s_lshl_b32 s{sT1}, s{sT1}, 7"); I(f"v_add_u32 {v(vGAS)}, s{sT1}, {v(t5)}")
        def su_att2():
            I(f"s_lshl_b32 s{sT1}, s{sHH}, 7"); I(f"s_lshl_b32 s{sT3}, s{sSub}, 4"); I(f"s_add_u32 s{sT1}, s{sT1}, s{sT3}")
            I(f"v_cmp_eq_u32 vcc, 0, {v(vL)}"); I(f"v_mov_b32 {v(t5)}, s{sT1}"); I(f"v_cndmask_b32 {v(vPubAS)}, {v(vOob)}, {v(t5)}, vcc")
            I(f"s_lshl_b32 s{sT1}, s{sW}, 2"); I(f"s_add_u32 s{sT3}, s{sT1}, {ML}"); I(f"v_mov_b32 {v(vMLw)}, s{sT3}")
            I(f"v_cmp_eq_u32 vcc, 63, {v(vL)}")
            I(f"s_add_u32 s{sT3}, s{sT1}, {LL}"); I(f"v_mov_b32 {v(t5)}, s{sT3}"); I(f"v_mov_b32 {v(vLLw)}, {JUNK}")
            I(f"v_cndmask_b32 {v(vLLw)}, {v(vLLw)}, {v(t5)}, vcc")
            I(f"s_lshl_b32 s{sT1}, s{sW}, 9"); I(f"s_add_u32 s{sT1}, s{sT1}, {OL}"); I(f"v_lshl_add_u32 {v(vOLw)}, {v(vL)}, 2, s{sT1}")
            I(f"v_lshlrev_b32 {v(vOLr)}, 3, {v(vL)}"); I(f"v_add_u32 {v(vOLr)}, {OL}, {v(vOLr)}")
        def su_v():
            I(f"v_bfe_u32 {v(t0)}, {v(vL)}, 2, 2")
            I(f"v_bfe_u32 {v(t3)}, {v(vL)}, 3, 1")
            I(f"v_bfe_u32 {v(t4)}, {v(vL)}, 2, 1")
            I(f"v_lshl_add_u32 {v(t5)}, {v(vC)}, 2, {v(t3)}"); I(f"v_lshl_add_u32 {v(t5)}, {v(t4)}, 4, {v(t5)}")
            I(f"v_lshl_add_u32 {v(t5)}, {v(t5)}, 8, s{sRing}")
            I(f"v_bfe_u32 {v(vRV)}, {v(vL)}, 1, 1")
            I(f"v_lshl_or_b32 {v(vRV)}, {v(t3)}, 1, {v(vRV)}")
            I(f"v_bfe_u32 {v(vRV+1)}, {v(vL)}, 4, 1"); I(f"v_lshl_or_b32 {v(vRV)}, {v(vRV+1)}, 2, {v(vRV)}")
            I(f"v_mov_b32 {v(vRT)}, {v(vRV)}")
            I(f"v_lshl_or_b32 {v(vRV)}, {v(t4)}, 3, {v(vRV)}")
            I(f"v_and_b32 {v(t4)}, 1, {v(vL)}"); I(f"v_lshlrev_b32 {v(t4)}, 3, {v(t4)}")
            I(f"v_lshl_add_u32 {v(t5)}, {v(vRV)}, 4, {v(t5)}"); I(f"v_add_u32 {v(vRV)}, {v(t5)}, {v(t4)}")
            I(f"v_xor_b32 {v(vRV+1)}, 16, {v(vRV)}"); I(f"v_add_u32 {v(vRV+1)}, 512, {v(vRV+1)}")
            for e in range(1, 8):
                I(f"v_xor_b32 {v(vRV+2*e)}, {32*e}, {v(vRV)}"); I(f"v_xor_b32 {v(vRV+2*e+1)}, {32*e}, {v(vRV+1)}")
            I(f"v_lshl_add_u32 {v(vRT)}, {v(vRT)}, 4, {v(t4)}"); I(f"v_lshl_add_u32 {v(vRT)}, {v(t0)}, 7, {v(vRT)}")
            I(f"v_lshl_add_u32 {v(vRT)}, {v(vC)}, 10, {v(vRT)}")
        def su_role():
            I(f"s_cmp_lg_u32 s{sRole}, 0"); I("s_cbranch_scc1 L_od_setup")
            I(f"s_lshl_b32 s{sT1}, s{sHH}, 3"); I(f"s_add_u32 s{sT1}, s{sT1}, s{sX}")
            I(f"s_cmp_lt_u32 s{sT1}, 27"); I(f"s_cselect_b32 s{sHasG}, 1, 0")
            I(f"s_lshl_b32 s{sT3}, s{sSub}, 2"); I(f"s_add_u32 s{sT3}, s{sT3}, s{sW}"); I(f"s_lshl_b32 s{sT3}, s{sT3}, 12")
            I(f"v_lshl_add_u32 {v(vXG)}, {v(vL)}, 4, s{sT3}")
            I(f"v_cmp_eq_u32 vcc, 0, {v(vC)}"); I(f"v_add_u32 {v(t4)}, 2560, {v(vPub)}"); I(f"s_lshl_b32 s{sT2}, s{sHH}, 2")
            I(f"v_cndmask_b32 {v(vPubC)}, {v(vOob)}, {v(t4)}, vcc")
            I(f"s_add_u32 s{sT2}, s{sT2}, s{sW}"); I(f"s_lshl_b32 s{sT3}, s{sT2}, 7"); I(f"s_lshl_b32 s{sT2}, s{sSub}, 3"); I(f"s_add_u32 s{sT3}, s{sT3}, s{sT2}"); I(f"s_add_u32 s{sT3}, s{sT3}, {MB_S}")
            I(f"v_and_b32 {v(t4)}, 31, {v(vL)}"); I(f"v_cmp_eq_u32 vcc, 31, {v(t4)}")
            I(f"v_lshrrev_b32 {v(t5)}, 5, {v(vL)}"); I(f"v_lshl_add_u32 {v(t3)}, {v(t5)}, 6, s{sT3}")
            I(f"v_cndmask_b32 {v(vPubS)}, {v(vOob)}, {v(t3)}, vcc")
            I(f"s_lshl_b32 s{sT3}, s{sW}, 5"); I(f"v_xor_b32 {v(vRT)}, s{sT3}, {v(vRT)}"); I(f"v_add_u32 {v(vRT+1)}, 0x10000, {v(vRT)}")
            I(f"v_and_b32 {v(t3)}, 7, {v(vL)}"); I(f"s_lshl_b32 s{sT3}, s{sX}, 10"); I(f"v_lshl_add_u32 {v(vFl)}, {v(t3)}, 7, s{sT3}")
            I(f"s_and_b32 s{sT2}, s{sW}, 1"); I(f"s_lshl_b32 s{sT2}, s{sT2}, 6"); I(f"s_lshl_b32 s{sT3}, s{sSub}, 7"); I(f"s_add_u32 s{sT2}, s{sT2}, s{sT3}")
            I(f"s_mul_i32 s{sT2}, s{sT2}, 3456"); I(f"s_lshl_b32 s{sT1}, s{sT1}, 7"); I(f"s_add_u32 s{sT2}, s{sT2}, s{sT1}")
            I(f"s_cmp_lt_u32 s{sW}, 2"); I(f"s_cselect_b32 s{rT}, s{pWG}, s{pWU}"); I(f"s_cselect_b32 s{rT+1}, s{pWG+1}, s{pWU+1}")
            I(f"s_add_u32 s{rT}, s{rT}, s{sT2}"); I(f"s_addc_u32 s{rT+1}, s{rT+1}, 0")
            I(f"s_mov_b32 s{rT+2}, {63*3456+128}")
            I(f"s_mov_b32 s{sInc}, {8*3456}"); I(f"s_movk_i32 s{sT3}, 3456")
            I("L_role_done:")
            I(f"v_lshrrev_b32 {v(t3)}, 3, {v(vL)}"); I(f"v_and_b32 {v(t4)}, 7, {v(vL)}"); I(f"v_and_b32 {v(t5)}, 2, {v(t3)}")
            I(f"v_xor_b32 {v(t4)}, {v(t4)}, {v(t5)}"); I(f"v_mul_u32_u24 {v(t3)}, s{sT3}, {v(t3)}")
            I(f"v_lshl_add_u32 {v(vTo)}, {v(t4)}, 4, {v(t3)}"); I(f"v_xor_b32 {v(t4)}, 4, {v(t4)}"); I(f"v_lshl_add_u32 {v(vTo+1)}, {v(t4)}, 4, {v(t3)}")
            if opt.get('notrail'): I(f"s_mov_b32 s{rT+2}, 0")
            c = Gen(); J = c.I
            J("L_od_setup:")
            J(f"s_cmp_lt_u32 s{sCB}, 10"); J(f"s_cselect_b32 s{sRole}, 1, 2")
            J(f"s_lshl_b32 s{sT2}, s{sX}, 2"); J(f"s_add_u32 s{sT2}, s{sT2}, s{sW}")
            J(f"s_lshl_b32 s{sT3}, s{sW}, 11"); J(f"v_lshrrev_b32 {v(t3)}, 1, {v(vN)}"); J(f"v_lshl_add_u32 {v(t3)}, {v(t3)}, 8, s{sT3}"); J(f"v_add_u32 {v(vOA)}, {v(t3)}, {v(vSp)}")
            J(f"s_lshl_b32 s{sT3}, s{sW}, 7"); J(f"v_lshl_add_u32 {v(vOS)}, {v(vC)}, 5, s{sT3}")
            J(f"s_lshl_b32 s{sT3}, s{sW}, 9"); J(f"v_lshrrev_b32 {v(t3)}, 2, {v(vN)}"); J(f"v_lshl_add_u32 {v(t3)}, {v(t3)}, 7, s{sT3}"); J(f"v_add_u32 {v(vDA)}, {v(t3)}, {v(vSp)}")
            J(f"s_lshl_b32 s{sT3}, s{sW}, 10"); J(f"s_add_u32 s{sT3}, s{sT3}, {RLO}"); J(f"v_lshl_add_u32 {v(t3)}, {v(vC)}, 8, s{sT3}"); J(f"v_lshl_add_u32 {v(vRLw)}, {v(vN)}, 2, {v(t3)}")
            J(f"v_lshlrev_b32 {v(vRLr)}, 4, {v(vL)}"); J(f"v_add_u32 {v(vRLr)}, {RLO}, {v(vRLr)}")
            J(f"s_lshr_b32 s{sT3}, s{sCB}, 1"); J(f"s_lshl_b32 s{sT3}, s{sT3}, 14"); J(f"s_lshl_b32 s{sT1}, s{sX}, 9"); J(f"s_add_u32 s{sT3}, s{sT3}, s{sT1}")
            J(f"s_and_b32 s{sT1}, s{sCB}, 1"); J(f"s_lshl_b32 s{sT1}, s{sT1}, 8"); J(f"s_add_u32 s{sT3}, s{sT3}, s{sT1}")
            J(f"v_lshl_add_u32 {v(t3)}, {v(vC)}, 12, s{sT3}"); J(f"v_lshl_add_u32 {v(vPubO)}, {v(vN)}, 4, {v(t3)}")
            J(f"v_add_u32 {v(vRT)}, s{sRing}, {v(vRT)}")
            for k in (1, 2, 3): J(f"v_xor_b32 {v(vRT+k)}, {32*k}, {v(vRT)}")
            J(f"s_lshl_b32 s{sT1}, s{sW}, 3"); J(f"s_add_u32 s{sT1}, s{sT1}, s{sX}"); J(f"s_cmp_lt_u32 s{sT1}, 27"); J(f"s_cselect_b32 s{sHasG}, 1, 0")
            J(f"s_mul_i32 s{sT2}, s{sT2}, {128*1280}"); J(f"s_lshl_b32 s{sT3}, s{sCB}, 7"); J(f"s_add_u32 s{sT2}, s{sT2}, s{sT3}")
            c.make_srd(rT, pWO, sT2, 127 * 1280 + 128)
            J(f"s_cmp_eq_u32 s{sRole}, 1"); J(f"s_cselect_b32 s{rT+2}, s{rT+2}, 0")
            J(f"s_mov_b32 s{sInc}, {8*1280}"); J(f"s_movk_i32 s{sT3}, 1280")
            J("s_cbranch_scc1 L_role_done")
            J(f"v_cmp_gt_u32 vcc, 32, {v(vL)}")
            J(f"v_and_b32 {v(t3)}, 31, {v(vL)}"); J(f"v_lshlrev_b32 {v(vXG)}, 4, {v(t3)}")
            J(f"v_lshlrev_b32 {v(vXLw)}, 4, {v(vL)}")
            J(f"s_cmp_lt_u32 s{sX}, 3"); J(f"s_cselect_b64 vcc, -1, vcc"); J(f"v_cndmask_b32 {v(vXLr)}, {v(vOob)}, {v(vXLw)}, vcc")
            J(f"v_cmp_gt_u32 vcc, 8, {v(vL)}")
            J(f"s_lshl_b32 s{sT1}, s{sX}, 7"); J(f"v_lshl_add_u32 {v(t3)}, {v(vL)}, 10, s{sT1}")
            J(f"v_cndmask_b32 {v(vFl)}, {v(vOob)}, {v(t3)}, vcc")
            J("s_branch L_role_done")
            self.cold.append([x.text for x in c.a.L])
        def lg0(): I("s_waitcnt lgkmcnt(0)")
        fine = self.stamp if opt.get('fine') else (lambda: None)
        def items(a_, b_):
            for i in range(a_, b_): self.item(i)
            fine()
        extra = [0]
        def wait2(tag):
            k = max(i for i, t in enumerate(self.vm) if t == tag); n = sum(1 for t in self.vm[k + 1:] if t not in ("q0", "q1"))
            if extra[0] == 0: I(f"s_waitcnt vmcnt({n})"); return
            l1 = self.lab("w2")
            I(f"s_cmp_eq_u32 s{sRole}, 1"); I(f"s_waitcnt vmcnt({n+extra[0]})"); I(f"s_cbranch_scc1 {l1}"); I(f"s_waitcnt vmcnt({n})"); I(f"{l1}:")
        def trail(a_, b_):
            l1 = self.lab("tr")
            I(f"s_cmp_lg_u32 s{sRole}, 1"); I(f"s_cbranch_scc1 {l1}")
            sv = list(self.vm)
            for i in range(a_, b_): self.item(i)
            self.vm = sv; extra[0] += b_ - a_
            I(f"{l1}:")
        su_k(); su_const(); items(16, 20); su_att(); items(20, 24); su_att2(); su_v(); items(24, 28); su_role(); items(28, 32)
        QI = (opt.get('qi', 40), opt.get('qi2', 52)); QK = (opt.get('qk', 52), opt.get('qk2', 64))
        kdone = 0
        for st in range(32, 68, 4):
            if st < 64 and st % 8 == 0 and kdone < (st - 32) // 4 + 2:
                self.wait_for(st - 32 + 7); self.k_read(kdone); self.k_read(kdone + 1); kdone += 2; lg0()
            for rl in range(2):
                if st == QK[rl]:
                    if kdone < 8:
                        self.wait_for(31)
                        while kdone < 8: self.k_read(kdone); kdone += 1
                        lg0()
                    sk = self.lab("qks")
                    I(f"s_cmp_{'lg' if rl == 0 else 'eq'}_u32 s{sRole}, 0"); I(f"s_cbranch_scc1 {sk}")
                    self.wait_for(f"q{rl}")
                    self.stamp()
                    self.a_input0()
                    self.qk_softmax()
                    lg0()
                    for grp in self.factor_ops():
                        for x in grp: I(x)
                    lg0()
                    self.stamp()
                    I(f"{sk}:")
                if st == QI[rl]:
                    w0 = self.lab("gi")
                    I(f"s_cmp_{'lg' if rl == 0 else 'eq'}_u32 s{sRole}, 0"); I(f"s_cbranch_scc1 {w0}")
                    I(f"s_cmp_lg_u32 s{sW}, 0"); I(f"s_cbranch_scc1 {w0}")
                    if not opt.get('noq0'): self.g5_issue_data(vQ0)
                    I(f"{w0}:")
                    self.vm.append(f"q{rl}")
            if st < 64: items(st, st + 4)
        if opt.get('noflag'): self.vmop(f"buffer_load_dword {v(vFlagsV)}, {v(vOob)}, {srd(rK)}, 0 offen", "fl")
        else: self.vmop(f"buffer_load_dwordx2 {vr(vFlagsV,2)}, {v(vFa)}, {srd(rGR)}, 0 offen sc1", "fl")
        self.wait_for(39); self.v_read(0)
        self.wait_for(47); self.v_read(1)
        lg0(); trail(64, 68)
        for e in range(8): self.pv(e, 0)
        wait2(55); self.v_read(2); trail(68, 72)
        wait2(59); trail(72, 76)
        wait2("fl")
        fp, fc, fr, fk = (self.lab(x) for x in ("fp", "fc", "fr", "fk"))
        self.left = 76
        self.stamp()
        self.v_read(3)
        I(f"{fc}:")
        I(f"v_cmp_ne_u32 vcc, s{sTag}, {v(vFlagsV+1)}")
        if not opt.get('noflag'): I(f"s_cbranch_vccnz {fr}")
        I(f"{fk}:")
        self.cold.append([f"{fp}:", "s_sleep 8", f"buffer_load_dwordx2 {vr(vFlagsV,2)}, {v(vFa)}, {srd(rGR)}, 0 offen sc1", "s_waitcnt vmcnt(0)", f"s_branch {fc}"])
        self.retry(fr, fp, fk, None)
        I(f"v_cmp_ne_u32 vcc, s{sXcc}, {v(vFlagsV)}"); I("s_cmp_lg_u64 vcc, 0")
        I(f"s_cselect_b32 s{sFast}, 0, 1")
        for e in range(8):
            I(f"s_waitcnt lgkmcnt({min(15, 14-2*e)})")
            self.pv(e, 1)
        for e in range(8): self.o_compact(e)
        I(f"s_add_u32 s{sSt}, s{sTag}, 1")
        I("L_a_end:")
        if opt.get('noend'): self.stamp(); I("s_branch L_end_prof")
        self.a_end()
        self.stamp()
        if self.opt.get('exitA'): I("s_branch L_end_prof")
        I(f"s_cmp_eq_u32 s{sRole}, 1"); I("s_cbranch_scc1 L_od")
        I(f"s_cmp_eq_u32 s{sRole}, 2"); I("s_cbranch_scc1 L_watch")
        self.zero(range(vS, vS + 8))
        I(f"s_cmp_eq_u32 s{sHasG}, 0"); I("s_cbranch_scc1 L_qg_nog")
        I(f"s_cmp_lg_u32 s{sLayer}, 0"); I("s_cbranch_scc1 L_qg_g")
        for i in range(64, 72): self.item(i)
        I("s_waitcnt vmcnt(0)"); I("s_barrier")
        for gu in range(2):
            for kk in range(4):
                for rd in range(2):
                    I(f"ds_read_b64_tr_b16 {vr(WG+16*gu+4*kk+2*rd,2)}, {v(vRT+gu)} offset:{(kk>>1)*32768+(kk&1)*4096+rd*512}")
        I("L_qg_g:")
        self.xg(sMO)
        self.stamp()
        self.gemv(WG)
        self.stamp()
        I(f"s_cmp_lg_u32 s{sW}, 0"); I("s_cbranch_scc1 L_qg_h_done")
        I(f"s_cmp_eq_u32 s{sSub}, 4"); I("s_cbranch_scc1 L_qg_h_done")
        self.h_stage()
        I("L_qg_h_done:")
        self.stamp()
        I(f"s_cmp_lg_u32 s{sLayer}, 0"); I("s_cbranch_scc1 L_end_prof")
        self.zero(range(vS, vS + 8))
        I("L_qg_q:")
        self.xg(sMD)
        self.stamp()
        I(f"s_add_u32 s{sSt}, s{sTag}, 2")
        self.gemv(WQ)
        I("L_next:")
        I(f"s_cmp_lg_u32 s{sLayer}, 0"); I("s_cbranch_scc1 L_end_prof")
        self.stamp()
        I(f"s_mov_b32 s{sLayer}, 1")
        I(f"s_add_u32 s{sSt}, s{sTag}, 2")
        I(f"s_mov_b32 s{sMA}, {MB_A1}"); I(f"s_mov_b32 s{sMAS}, {MB_AS1}"); I(f"s_mov_b32 s{sMO}, {MB_O1}")
        I(f"s_mov_b32 s{sMD}, {MB_D1}"); I(f"s_mov_b32 s{sMH}, {MB_H1}")
        self.zero([vS + 4 * t + k for t in range(8) for k in range(2)])
        self.zero([vO + 4 * t + k for t in range(8) for k in range(2)])
        self.a_input()
        self.stamp()
        self.qk_softmax()
        I(f"s_add_u32 s{sSt}, s{sTag}, 3")
        I("s_waitcnt lgkmcnt(0)")
        fo = self.factor_ops()
        for e in range(8):
            self.pv(e, 0); self.pv(e, 1)
            for x in fo[e]: I(x)
            if e >= 4: self.o_compact(e - 4)
        for e in range(4, 8): self.o_compact(e)
        I("s_branch L_a_end")
        I("L_qg_nog:")
        self.xg(sMO)
        self.x_unpack()
        I(f"s_cmp_eq_u32 s{sLayer}, 0"); I("s_cbranch_scc1 L_qg_q")
        I(f"s_sub_u32 s{sT0}, s{sX}, 4"); I(f"s_cmp_lg_u32 s{sT0}, s{sW}"); I("s_cbranch_scc1 L_end_prof")
        I(f"v_and_b32 {v(vT+8)}, 31, {v(vL)}"); I(f"v_lshrrev_b32 {v(vT+9)}, 5, {v(vL)}")
        I(f"v_lshlrev_b32 {v(vT+8)}, 3, {v(vT+8)}"); I(f"v_lshl_or_b32 {v(vT+8)}, {v(vT+9)}, 2, {v(vT+8)}")
        I(f"s_mul_i32 s{sT2}, s{sW}, 1280"); I(f"s_lshl_b32 s{sT3}, s{sSub}, 8"); I(f"s_add_u32 s{sT2}, s{sT2}, s{sT3}")
        I(f"v_add_u32 {v(vT+8)}, s{sT2}, {v(vT+8)}")
        self.xg(sMD)
        I(f"global_store_dword {v(vT+8)}, {v(vXpk)}, {sp(pOUT)}")
        I(f"v_mov_b32 {v(vT+9)}, s{sSt}"); I(f"v_mov_b32 {v(vT+10)}, {MB_E}"); I("s_mov_b64 exec, 1")
        I(f"s_cmp_lg_u32 s2, 196"); I("s_cbranch_scc1 L_notag")
        I(f"buffer_store_dword {v(vT+9)}, {v(vT+10)}, {srd(rWS)}, 0 offen")
        I("L_notag:")
        I("s_mov_b64 exec, -1")
        self.stamp()
        I("s_branch L_end_prof")
        I("L_od:")
        I(f"s_cmp_lg_u32 s{sLayer}, 0"); I("s_cbranch_scc1 L_od_o")
        for i in range(self.left, 80): self.item(i)
        for kk in range(4):
            I(f"s_waitcnt vmcnt({12-4*kk})")
            for t in range(4):
                for rd in range(2):
                    I(f"ds_read_b64_tr_b16 {vr(WO+16*t+4*kk+2*rd,2)}, {v(vRT+t)} offset:{kk*4096+rd*512}")
        I("s_waitcnt lgkmcnt(0)")
        I("L_od_o:")
        self.stamp()
        self.o_stage()
        self.stamp()
        I(f"s_cmp_lg_u32 s{sLayer}, 0"); I("s_cbranch_scc1 L_od_d")
        I(f"s_lshl_b32 s{sT1}, s{sW}, 3"); I(f"s_add_u32 s{sT1}, s{sT1}, s{sX}"); I(f"s_mul_i32 s{sT1}, s{sT1}, {64*1280}")
        I(f"s_lshl_b32 s{sT3}, s{sCB}, 7"); I(f"s_add_u32 s{sT1}, s{sT1}, s{sT3}")
        self.make_srd(rT, pWD, sT1, 0)
        I(f"s_mul_i32 s{rT+2}, s{sHasG}, {63*1280+128}")
        for i in range(64, 72): self.item(i)
        I("s_waitcnt vmcnt(0)")
        for kk in range(2):
            for t in range(4):
                for rd in range(2):
                    I(f"ds_read_b64_tr_b16 {vr(WD+8*t+4*kk+2*rd,2)}, {v(vRT+t)} offset:{kk*4096+rd*512}")
        I("s_waitcnt lgkmcnt(0)")
        I("L_od_d:")
        self.d_stage()
        self.stamp()
        I("s_branch L_next")
        I("L_watch:")
        I(f"s_cmp_lg_u32 s{sCB}, 10"); I("s_cbranch_scc1 L_next"); I(f"s_cmp_lg_u32 s{sW}, 3"); I("s_cbranch_scc1 L_next")
        I(f"v_mov_b32 {v(vT+1)}, s{sTag}")
        wp, wr, wk = (self.lab(x) for x in ("wp", "wr", "wk"))
        I(f"{wp}:")
        I(f"buffer_load_dwordx2 {vr(vG,2)}, {v(vXG)}, {srd(rGR)}, s{sMAS} offen sc1")
        I("s_waitcnt vmcnt(0)")
        I(f"v_cmp_ne_u32 vcc, s{sTag}, {v(vG+1)}")
        I(f"s_cbranch_vccnz {wr}")
        I(f"{wk}:")
        self.retry(wr, wp, wk, None)
        I(f"buffer_store_dword {v(vT+1)}, {v(vFl)}, {srd(rWS)}, s{sMF} offen sc1")
        I(f"s_add_u32 s{sMF}, s{sMF}, {SZ_F}")
        wp, wr, wk = (self.lab(x) for x in ("wp", "wr", "wk"))
        I(f"{wp}:")
        I(f"buffer_load_dwordx4 {vr(vG,4)}, {v(vXLw)}, {srd(rGR)}, s{sMH} offen sc1")
        I(f"buffer_load_dwordx4 {vr(vG+4,4)}, {v(vXLr)}, {srd(rGR)}, s{sMH} offen offset:1024 sc1")
        I("s_waitcnt vmcnt(0)")
        I(f"v_max_u32 {v(vT)}, {v(vG)}, {v(vG+4)}")
        I(f"v_cmp_eq_u32 vcc, -1, {v(vT)}")
        I(f"s_cbranch_vccnz {wr}")
        I(f"{wk}:")
        self.retry(wr, wp, wk, None)
        I(f"buffer_store_dword {v(vT+1)}, {v(vFl)}, {srd(rWS)}, s{sMF} offen sc1")
        I(f"s_add_u32 s{sMF}, s{sMF}, {SZ_F}")
        I("s_branch L_next")
        I("L_end_prof:")
        if self.prof:
            I(f"s_lshl_b32 s{sT2}, s2, 2"); I(f"s_add_u32 s{sT2}, s{sT2}, s{sW}"); I(f"s_lshl_b32 s{sT2}, s{sT2}, 8"); I(f"s_add_u32 s{sT2}, s{sT2}, {MB_PROF}")
            I(f"v_lshlrev_b32 {v(vT)}, 2, {v(vL)}")
            I(f"buffer_store_dword {v(vStampV)}, {v(vT)}, {srd(rWS)}, s{sT2} offen")
            if self.opt.get('exitA'): I("s_endpgm")
            I(f"s_cmp_lg_u32 s2, 196"); I("s_cbranch_scc1 L_end"); I(f"s_cmp_lg_u32 s{sW}, 0"); I("s_cbranch_scc1 L_end")
            I(f"v_readlane_b32 s{sT0}, {v(vStampV)}, 0"); I(f"v_subrev_u32 {v(vT+1)}, s{sT0}, {v(vStampV)}")
            I(f"global_store_dword {v(vT)}, {v(vT+1)}, {sp(pDBG)} sc1")
        I("L_end:")
        I("s_endpgm")
        for c in self.cold:
            for x in c: I(x)
        I("s_endpgm")
        I("L_codeused:")
        I(".fill (4096 - ((L_codeused - L_pc) & 4095)) / 4, 4, 0xbf810000")
        I("L_codeend:")
        errs = self.a.check_branches()
        assert not errs, "\n".join(errs)
        head = [f"; @launch grid=(256,1,1) block=(256,1,1) lds={LDS_BYTES}",
                "; generated by dev/gen.py (hand-written generator); persistent kernel, one workgroup per CU",
                '.amdgcn_target "amdgcn-amd-amdhsa--gfx950"', ".text", f".globl {NAME}_kernel", ".p2align 8", f".type {NAME}_kernel,@function"]
        tail = ['.section .rodata,"a"', ".p2align 6", f".amdhsa_kernel {NAME}_kernel",
                "  .amdhsa_next_free_vgpr 512", "  .amdhsa_next_free_sgpr 96", "  .amdhsa_accum_offset 256",
                "  .amdhsa_group_segment_fixed_size 0", "  .amdhsa_kernarg_size 96", "  .amdhsa_user_sgpr_count 2",
                "  .amdhsa_user_sgpr_kernarg_segment_ptr 1", "  .amdhsa_system_sgpr_workgroup_id_x 1",
                "  .amdhsa_float_denorm_mode_32 3", ".end_amdhsa_kernel"]
        return "\n".join(head) + "\n" + self.a.text() + "\n".join(tail) + "\n"

if __name__ == "__main__":
    open("k.s", "w").write(Gen(False).build())
    open("k_prof.s", "w").write(Gen(True).build())
    for a in sys.argv[1:]:
        o = {k.split("=")[0]: (int(k.split("=")[1]) if "=" in k else 1) for k in a.split(",")}
        open(f"kx_{a.replace(',', '_').replace('=', '')}.s", "w").write(Gen(not o.get('noprof'), **o).build())
    print("vgprs used", vn[0], "LDS", LDS_BYTES, "WS", WS_USED, "Z2", Z2, "PROF", MB_PROF)
```

```python
import sys
from asmlib import Asm
NAME = "interleave_layers__sliding_block_cached__glu_gated_reglu__decode"

off = 0
def take(n):
    global off
    o = off; off += n; return o
MB_A0 = take(8192); MB_A1 = take(8192); MB_H0 = take(2048); MB_H1 = take(2048)
Z2 = off
MB_AS0 = take(512); MB_AS1 = take(512)
SZ_QG = 4 * 4 * 5 * 5 * 128
MB_R = take(SZ_QG)
MB_S = take(2048)
MB_X = take(32 * 128)
take(-off % 4096)
GSTRIDE = off
off = 8 * GSTRIDE
SZ_OD = 5 * 4 * 4096
MB_O0 = take(SZ_OD); MB_O1 = take(SZ_OD); MB_D0 = take(SZ_OD); MB_D1 = take(SZ_OD)
SZ_F = 64 * 128
MB_F = take(4 * SZ_F)
MB_E = take(256)
MB_PROF = take(1024 * 256)
WS_USED = off
S16 = 0xFFFFFFFF
OOB = 0x80000000
TOUCH_OFF = 0
LIMIT = 1 << 20

RING = 0
XL = 131072
QL = XL + 1536
PL = QL + 256
ML = PL + 1024
LL = ML + 16
JUNK = LL + 16
OL = QL + 2048
RLO = OL + 2048
RLD = RLO + 4096
LDS_BYTES = RLD + 4096

pX, pK, pV, pWQ, pWO, pWG, pWU, pWD, pOUT, pDBG, pWS = 16, 18, 20, 22, 24, 28, 30, 32, 34, 36, 38
rK, rV, rWS, rT, rGR = 40, 44, 48, 52, 4
(sW, sX, sHH, sSub, sH, sRole, sHasG, sOff, sRing, sInc, sFast, sCnt, sLayer, sT0, sT1, sT2, sT3,
 sSt, sFq, sMA, sMAS, sMO, sMD, sMH, sMR, sXcc, sCB, sStamp, sM0, sC640, sEps, sKs) = range(56, 88)
sMF = 92; sTag = 93
sTime = 88
sAny = 90
def srd(r): return f"s[{r}:{r+3}]"
def sp(r): return f"s[{r}:{r+1}]"

vn = [1]
def valloc(n=1, align=1):
    while vn[0] % align: vn[0] += 1
    r = vn[0]; vn[0] += n; return r
vL = valloc(); vIdx = valloc(); vStampV = valloc()
vKV = 224; vRK = 228; vRV = 232
vTo = valloc(2); vRT = valloc(4)
vXG = valloc(); vXLw = valloc(); vXLr = valloc(); vPub = valloc(); vPubC = valloc(); vPubS = valloc()
vGA = valloc(); vGAS = valloc(); vGH = valloc(); vGHS = valloc(); vPubH = valloc()
vQLw = valloc(); vQLr = valloc(); vPLw = valloc(); vPLr = valloc(); vMLw = valloc(); vLLw = valloc(); vOLw = valloc(); vOLr = valloc()
vPubA = valloc(); vPubAS = valloc(); vCst = valloc()
vFl = 248; vFlagsV = 220; vFa = 250; vQ0 = 255
vOA = vXG; vOS = vXLw; vDA = vXLr; vRLw = vPub; vRLr = vPubC; vPubO = vPubS
vXres = valloc(2, 2); vKf = valloc(); vMk = valloc(); vF = valloc(); vPs = valloc(); vXpk = valloc()
vT = valloc(16, 4)
vG = valloc(32, 4)
vA = valloc(8, 4)
vS = valloc(32, 4)
vO = valloc(32, 4)
vW = 160
assert vn[0] <= vW, vn[0]
WQ = vW; WG = vW + 32; WO = vW; WD = vW + 64
def v(r): return f"v{r}"
def vr(r, n): return f"v[{r}:{r+n-1}]"
def ar(r, n): return f"a[{r}:{r+n-1}]"
DPPALL = "row_mask:0xf bank_mask:0xf"

DEFAULTS = dict(pre=2)
class Gen:
    def __init__(self, prof=False, **opt):
        self.a = Asm(); self.prof = prof; self.opt = dict(DEFAULTS, **opt)
        self.vm = []
        self.cold = []
        self.uid = 0
    def I(self, t): self.a(t)
    def lab(self, p):
        self.uid += 1; return f"L_{p}_{self.uid}"
    def vmop(self, text, tag=None):
        self.I(text); self.vm.append(tag)
    def wait_for(self, tag):
        k = max(i for i, t in enumerate(self.vm) if t == tag)
        n = sum(1 for t in self.vm[k + 1:] if t not in ("q0", "q1"))
        self.I(f"s_waitcnt vmcnt({n})")
    def mark(self, n):
        if self.opt.get('spin') == n:
            l = self.lab("mk"); self.I("s_cmp_lg_u32 s14, 0"); self.I(f"s_cbranch_scc1 {l}"); self.I("s_memrealtime s[94:95]"); self.I("s_mov_b32 s14, 1"); self.I("s_waitcnt lgkmcnt(0)"); self.I(f"{l}:")
    def stamp(self):
        if not self.prof: return
        I = self.I
        I(f"s_memrealtime {sp(sTime)}"); I(f"s_mov_b32 s{sM0}, m0"); I(f"s_mov_b32 m0, s{sStamp}")
        I("s_waitcnt lgkmcnt(0)"); I(f"v_writelane_b32 {v(vStampV)}, s{sTime}, m0")
        I(f"s_mov_b32 m0, s{sM0}"); I(f"s_add_u32 s{sStamp}, s{sStamp}, 1")
    def pub_local(self, stores, cmp=True, flag=None):
        slow = self.lab("slow"); done = self.lab("pubd")
        if cmp: self.I(f"s_cmp_eq_u32 s{sFast if flag is None else flag}, 0")
        self.I(f"s_cbranch_scc1 {slow}")
        for s in stores: self.I(s)
        self.I(f"{done}:")
        self.cold.append([f"{slow}:"] + [s + " sc1" for s in stores] + [f"s_branch {done}"])
    def retry(self, name, again, ok, raws=None):
        self.cold.append([f"{name}:", f"s_add_u32 s{sCnt}, s{sCnt}, 1", f"s_cmp_lt_u32 s{sCnt}, {LIMIT}", f"s_cbranch_scc1 {again}", f"s_branch {ok}"])
    def tagchk(self, bad, regs, stag, first=False):
        for k, r in enumerate(regs):
            if first and k == 0: self.I(f"v_xor_b32 {v(bad)}, s{stag}, {v(r)}")
            else: self.I(f"v_bitop3_b32 {v(bad)}, {v(bad)}, {v(r)}, s{stag} bitop3:0xf6")
    def settag(self, regs, stag):
        for r in regs: self.I(f"v_bfi_b32 {v(r)}, v0, s{stag}, {v(r)}")

    def dma(self, voff, rs, tag, inc):
        self.vmop(f"buffer_load_dwordx4 {v(voff)}, {srd(rs)}, s{sOff} offen nt lds", tag)
        self.I("s_addk_i32 m0, 1024")
        if isinstance(inc, int): self.I(f"s_addk_i32 s{sOff}, {inc}") if inc < 32768 else self.I(f"s_add_u32 s{sOff}, s{sOff}, {inc}")
        else: self.I(f"s_add_u32 s{sOff}, s{sOff}, {inc}")
    def item(self, i):
        thr = self.opt.get('thr', 0)
        if thr and i >= self.opt.get('thr0', 0) and i < self.opt.get('thr1', 80): self.I(f"s_waitcnt vmcnt({thr-1})")
        if i in (0, 32):
            self.I(f"s_mov_b32 m0, s{sRing}"); self.I(f"s_lshl_b32 s{sOff}, s{sW}, 10")
        if i == 64:
            self.I(f"s_mov_b32 m0, s{sRing}"); self.I(f"s_mov_b32 s{sOff}, 0")
        if i < 32: self.dma(vKV + (i & 3), rK, i, 4096)
        elif i < 64:
            j = i - 32; self.dma(vKV + (j & 1) + 2 * ((j >> 2) & 1), rV, i, 4096)
        else: self.dma(vTo + (i & 1), rT, i, f"s{sInc}")
    def k_read(self, t):
        for s in range(4):
            self.I(f"ds_read_b128 {ar(16*t+4*s,4)}, {v(vRK+s)} offset:{t*4096}")
    def v_read(self, s):
        for e in range(8):
            for rd in range(2):
                self.I(f"ds_read_b64_tr_b16 {ar(128+16*e+4*s+2*rd,2)}, {v(vRV+2*e+rd)} offset:{s*8192}")

    def xg(self, smb):
        I = self.I
        poll = self.lab("xg"); rt = self.lab("xgr"); ok = self.lab("xgk")
        hp = self.lab("xh"); hr = self.lab("xhr")
        bad = vT + 4
        I(f"{hp}:")
        I(f"buffer_load_dword {v(vT)}, {v(vFl)}, {srd(rWS)}, s{sMF} offen sc1")
        I("s_waitcnt vmcnt(0)")
        I(f"v_cmp_ne_u32 vcc, s{sTag}, {v(vT)}")
        I(f"s_cbranch_vccnz {hr}")
        self.retry(hr, hp, poll)
        I(f"{poll}:")
        for u in range(4):
            I(f"buffer_load_dwordx4 {vr(vG+4*u,4)}, {v(vXG)}, {srd(rWS)}, s{smb} offen offset:{u*1024} sc1")
        I("s_waitcnt vmcnt(3)")
        self.tagchk(bad, range(vG, vG + 4), sTag, first=True)
        I("s_waitcnt vmcnt(2)")
        I(f"v_pk_add_f32 {vr(vT,2)}, {vr(vG,2)}, {vr(vG+4,2)}")
        I(f"v_pk_add_f32 {vr(vT+2,2)}, {vr(vG+2,2)}, {vr(vG+6,2)}")
        self.tagchk(bad, range(vG + 4, vG + 8), sTag)
        I("s_waitcnt vmcnt(1)")
        I(f"v_pk_add_f32 {vr(vT,2)}, {vr(vT,2)}, {vr(vG+8,2)}")
        I(f"v_pk_add_f32 {vr(vT+2,2)}, {vr(vT+2,2)}, {vr(vG+10,2)}")
        self.tagchk(bad, range(vG + 8, vG + 12), sTag)
        I("s_waitcnt vmcnt(0)")
        I(f"v_pk_add_f32 {vr(vT,2)}, {vr(vT,2)}, {vr(vG+12,2)}")
        I(f"v_pk_add_f32 {vr(vT+2,2)}, {vr(vT+2,2)}, {vr(vG+14,2)}")
        self.tagchk(bad, range(vG + 12, vG + 14), sTag)
        I(f"v_permlane32_swap_b32 {v(vT)}, {v(vT+2)}")
        I(f"v_permlane32_swap_b32 {v(vT+1)}, {v(vT+3)}")
        self.tagchk(bad, range(vG + 14, vG + 16), sTag)
        I(f"v_pk_add_f32 {vr(vT,2)}, {vr(vT,2)}, {vr(vT+2,2)}")
        I(f"v_and_b32 {v(bad)}, v0, {v(bad)}")
        I(f"v_pk_add_f32 {vr(vT,2)}, {vr(vT,2)}, {vr(vXres,2)}")
        I(f"v_cmp_ne_u32 vcc, 0, {v(bad)}")
        I(f"v_cvt_pk_bf16_f32 {v(vXpk)}, {v(vT)}, {v(vT+1)}")
        I(f"s_cbranch_vccnz {rt}")
        I(f"{ok}:")
        I(f"s_add_u32 s{sMF}, s{sMF}, {SZ_F}")
        self.retry(rt, poll, ok)
    def x_unpack(self):
        self.I(f"v_lshlrev_b32 {v(vXres)}, 16, {v(vXpk)}")
        self.I(f"v_and_b32 {v(vXres+1)}, 0xffff0000, {v(vXpk)}")
    def zero(self, regs):
        for r in regs: self.I(f"v_mov_b32 {v(r)}, 0")
    def gemv(self, W):
        I = self.I
        I(f"ds_write_b32 {v(vXLw)}, {v(vXpk)}")
        self.x_unpack()
        t0, t1 = vT + 4, vT + 5
        I(f"v_add_f32 {v(t0)}, {v(vXres)}, {v(vXres+1)}")
        I(f"v_mul_f32 {v(t1)}, {v(vXres)}, {v(vXres)}")
        I(f"v_fmac_f32 {v(t1)}, {v(vXres+1)}, {v(vXres+1)}")
        I("s_waitcnt lgkmcnt(0)"); I("s_barrier")
        I(f"ds_read_b128 {vr(vA,4)}, {v(vXLr)}")
        I(f"ds_read_b128 {vr(vA+4,4)}, {v(vXLr)} offset:128")
        I(f"v_permlane32_swap_b32 {v(t0)}, {v(t1)}")
        I(f"v_add_f32 {v(t0)}, {v(t0)}, {v(t1)}")
        I(f"v_mov_b32 {v(t1)}, s{sSt}")
        for k in (8, 4, 2, 1):
            I(f"v_add_f32_dpp {v(t0)}, {v(t0)}, {v(t0)} row_ror:{k} {DPPALL}")
        I("s_waitcnt lgkmcnt(1)")
        I(f"v_smfmac_f32_16x16x64_bf16 {vr(vS,4)}, {vr(vA,4)}, {vr(W,8)}, {v(vIdx)}")
        I(f"v_smfmac_f32_16x16x64_bf16 {vr(vS+4,4)}, {vr(vA,4)}, {vr(W+16,8)}, {v(vIdx)}")
        I("s_waitcnt lgkmcnt(0)")
        I(f"v_smfmac_f32_16x16x64_bf16 {vr(vS,4)}, {vr(vA+4,4)}, {vr(W+8,8)}, {v(vIdx)}")
        I(f"v_smfmac_f32_16x16x64_bf16 {vr(vS+4,4)}, {vr(vA+4,4)}, {vr(W+24,8)}, {v(vIdx)}")
        I(f"v_add_f32_dpp {v(t0)}, {v(t0)}, {v(t0)} row_bcast:15 row_mask:0xa bank_mask:0xf")
        self.pub_local([f"buffer_store_dwordx2 {vr(t0,2)}, {v(vPubS)}, {srd(rGR)}, 0 offen"])
        I(f"v_add_f32 {v(vT)}, {v(vS)}, {v(vS+1)}")
        I(f"v_add_f32 {v(vT+1)}, {v(vS+4)}, {v(vS+5)}")
        I(f"v_add_f32 {v(vT+2)}, {v(vS+2)}, {v(vS+3)}")
        I(f"v_add_f32 {v(vT+3)}, {v(vS+6)}, {v(vS+7)}")
        self.settag(range(vT, vT + 4), sSt)
        self.pub_local([f"buffer_store_dwordx2 {vr(vT,2)}, {v(vPub)}, {srd(rGR)}, s{sMR} offen",
                        f"buffer_store_dwordx2 {vr(vT+2,2)}, {v(vPubC)}, {srd(rGR)}, s{sMR} offen"], cmp=False)

    def g5_issue_stats(self, vst):
        self.I(f"buffer_load_dwordx4 {vr(vG+20,4)}, {v(vst)}, {srd(rGR)}, 0 offen sc1")
        self.I(f"buffer_load_dwordx4 {vr(vG+24,4)}, {v(vst)}, {srd(rGR)}, 0 offen offset:16 sc1")
        self.I(f"buffer_load_dwordx2 {vr(vG+28,2)}, {v(vst)}, {srd(rGR)}, 0 offen offset:32 sc1")
    def g5_issue_data(self, vdat):
        for p in range(5):
            self.I(f"buffer_load_dwordx4 {vr(vG+4*p,4)}, {v(vdat)}, {srd(rGR)}, s{sMR} offen offset:{p*128} sc1")
    def g5_stats(self, bad):
        I = self.I
        I(f"v_add_f32 {v(vT+8)}, {v(vG+20)}, {v(vG+22)}")
        I(f"v_add_f32 {v(vT+9)}, {v(vG+24)}, {v(vG+26)}")
        I(f"v_add_f32 {v(vT+8)}, {v(vT+8)}, {v(vG+28)}")
        I(f"v_add_f32 {v(vT+8)}, {v(vT+8)}, {v(vT+9)}")
        I(f"v_mul_f32 {v(vT+8)}, s{sC640}, {v(vT+8)}")
        I(f"v_mov_b32 {v(vT+9)}, {v(vT+8)}")
        self.tagchk(bad, range(vG + 21, vG + 30, 2), sSt, first=True)
        I(f"v_permlane32_swap_b32 {v(vT+8)}, {v(vT+9)}")
    def g5_var(self):
        I = self.I
        I(f"v_fma_f32 {v(vT+10)}, -{v(vT+8)}, {v(vT+8)}, {v(vT+9)}")
        I(f"v_max_f32 {v(vT+10)}, 0, {v(vT+10)}")
        I(f"v_add_f32 {v(vT+10)}, s{sEps}, {v(vT+10)}")
    def g5(self, vdat, vst):
        I = self.I
        bs, bd = vT + 11, vT + 12
        self.g5_issue_stats(vst); self.g5_issue_data(vdat)
        I("s_waitcnt vmcnt(5)")
        self.g5_stats(bs); self.g5_var()
        I("s_waitcnt vmcnt(3)")
        I(f"v_pk_add_f32 {vr(vT,2)}, {vr(vG,2)}, {vr(vG+4,2)}")
        I(f"v_pk_add_f32 {vr(vT+2,2)}, {vr(vG+2,2)}, {vr(vG+6,2)}")
        self.tagchk(bd, range(vG, vG + 8), sSt, first=True)
        I("s_waitcnt vmcnt(1)")
        I(f"v_pk_add_f32 {vr(vT+4,2)}, {vr(vG+8,2)}, {vr(vG+12,2)}")
        I(f"v_pk_add_f32 {vr(vT+6,2)}, {vr(vG+10,2)}, {vr(vG+14,2)}")
        I(f"v_pk_add_f32 {vr(vT,2)}, {vr(vT,2)}, {vr(vT+4,2)}")
        I(f"v_pk_add_f32 {vr(vT+2,2)}, {vr(vT+2,2)}, {vr(vT+6,2)}")
        self.tagchk(bd, range(vG + 8, vG + 16), sSt)
        I("s_waitcnt vmcnt(0)")
        I(f"v_pk_add_f32 {vr(vT,2)}, {vr(vT,2)}, {vr(vG+16,2)}")
        I(f"v_pk_add_f32 {vr(vT+2,2)}, {vr(vT+2,2)}, {vr(vG+18,2)}")
        self.tagchk(bd, range(vG + 16, vG + 18), sSt)
        for k in range(4):
            I(f"v_permlane32_swap_b32 {v(vT+k)}, {v(vT+4+k)}")
        self.tagchk(bd, range(vG + 18, vG + 20), sSt)
        I(f"v_and_or_b32 {v(bd)}, {v(bd)}, v0, {v(bs)}")
        for k in range(4):
            I(f"v_fma_f32 {v(vT+k)}, -{v(vT+8)}, {v(vT+4+k)}, {v(vT+k)}")
            if k == 0: I(f"v_cmp_ne_u32 vcc, 0, {v(bd)}")

    def a_input0(self):
        I = self.I
        c0, r0, p0, k0, join = (self.lab(x) for x in ("a0c", "a0r", "a0p", "a0k", "a0j"))
        bad = vT + 12
        I(f"v_mov_b32 {v(vT+10)}, 1.0")
        I(f"s_cmp_lg_u32 s{sW}, 0"); I(f"s_cbranch_scc1 {join}")
        I(f"{c0}:")
        self.tagchk(bad, range(vG, vG + 20), sSt, first=True)
        I(f"v_and_b32 {v(bad)}, v0, {v(bad)}")
        I(f"v_cmp_ne_u32 vcc, 0, {v(bad)}")
        I("s_cmp_lg_u32 vcc_lo, 0")
        if not self.opt.get('noq0'): I(f"s_cbranch_scc1 {r0}")
        I(f"{k0}:")
        sub = Gen(); sub.g5_issue_data(vQ0)
        self.cold.append([f"{p0}:", "s_sleep 8"] + [x.text for x in sub.a.L] + ["s_waitcnt vmcnt(0)", f"s_branch {c0}"])
        self.retry(r0, p0, k0)
        for p in range(1, 5):
            I(f"v_pk_add_f32 {vr(vG,2)}, {vr(vG,2)}, {vr(vG+4*p,2)}"); I(f"v_pk_add_f32 {vr(vG+2,2)}, {vr(vG+2,2)}, {vr(vG+4*p+2,2)}")
        I(f"v_cvt_pk_bf16_f32 {v(vT+6)}, {v(vG)}, {v(vG+2)}")
        I(f"v_cvt_pk_bf16_f32 {v(vT+7)}, {v(vG+1)}, {v(vG+3)}")
        I(f"ds_write2_b32 {v(vQLw)}, {v(vT+6)}, {v(vT+7)} offset0:0 offset1:8")
        I(f"{join}:")
        I("s_waitcnt lgkmcnt(0)"); I("s_barrier")
    def a_input(self):
        I = self.I
        join = self.lab("ai_j")
        p0, r0, k0 = (self.lab(x) for x in ("ai_p", "ai_r", "ai_k"))
        p1, r1, k1 = (self.lab(x) for x in ("ai_p", "ai_r", "ai_k"))
        I(f"s_cmp_lg_u32 s{sW}, 0"); I(f"s_cbranch_scc1 {p1}")
        I(f"{p0}:")
        self.g5(vGA, vGAS)
        I(f"v_cvt_pk_bf16_f32 {v(vT+6)}, {v(vT)}, {v(vT+2)}")
        I(f"v_cvt_pk_bf16_f32 {v(vT+7)}, {v(vT+1)}, {v(vT+3)}")
        I(f"s_cbranch_vccnz {r0}")
        I(f"{k0}:")
        I(f"ds_write2_b32 {v(vQLw)}, {v(vT+6)}, {v(vT+7)} offset0:0 offset1:8")
        I(f"{join}:")
        I("s_waitcnt lgkmcnt(0)"); I("s_barrier")
        self.retry(r0, p0, k0)
        sub = Gen()
        sub.I(f"{p1}:")
        sub.g5_issue_stats(vGAS); sub.I("s_waitcnt vmcnt(0)")
        sub.g5_stats(vT + 11); sub.g5_var()
        sub.I(f"v_cmp_ne_u32 vcc, 0, {v(vT+11)}"); sub.I(f"s_cbranch_vccnz {r1}"); sub.I(f"{k1}:"); sub.I(f"s_branch {join}")
        self.cold.append([i.text for i in sub.a.L])
        self.retry(r1, p1, k1)

    def qk_softmax(self):
        I = self.I
        I(f"ds_read_b128 {vr(vA,4)}, {v(vQLr)}")
        I(f"ds_read_b128 {vr(vA+4,4)}, {v(vQLr)} offset:128")
        I(f"v_rsq_f32 {v(vKf)}, {v(vT+10)}")
        I(f"v_mul_f32 {v(vKf)}, s{sKs}, {v(vKf)}")
        I("s_waitcnt lgkmcnt(0)")
        F = lambda t: vS + 4 * t
        m = vT
        def add(t): I(f"v_add_f32 {v(F(t))}, {v(F(t))}, {v(F(t)+1)}")
        for t in range(8):
            I(f"v_smfmac_f32_16x16x64_bf16 {vr(F(t),4)}, {vr(vA,4)}, {ar(16*t,8)}, {v(vIdx)}")
            I(f"v_smfmac_f32_16x16x64_bf16 {vr(F(t),4)}, {vr(vA+4,4)}, {ar(16*t+8,8)}, {v(vIdx)}")
            if t >= 4: add(t - 4)
        I(f"v_max3_f32 {v(m)}, {v(F(0))}, {v(F(1))}, {v(F(2))}")
        add(4); add(5)
        I(f"v_max3_f32 {v(m)}, {v(m)}, {v(F(3))}, {v(F(4))}")
        add(6)
        I(f"v_max3_f32 {v(m)}, {v(m)}, {v(F(5))}, {v(F(6))}")
        add(7)
        I(f"v_max_f32 {v(m)}, {v(m)}, {v(F(7))}")
        mv = [(0, 2, 2), (1, 3, 2), (0, 4, 4), (1, 5, 4), (0, 6, 8), (1, 7, 8)]
        for q, k in enumerate((8, 4, 2, 1)):
            for (d, s_, msk) in mv[2 * q:2 * q + 2]:
                I(f"v_mov_b32_dpp {v(F(d))}, {v(F(s_))} quad_perm:[0,1,2,3] row_mask:{msk:#x} bank_mask:0xf")
            I(f"v_max_f32_dpp {v(m)}, {v(m)}, {v(m)} row_ror:{k} {DPPALL}")
        I(f"v_mul_f32 {v(vMk)}, {v(m)}, {v(vKf)}")
        I(f"v_fma_f32 {v(vT+1)}, {v(F(0))}, {v(vKf)}, -{v(vMk)}")
        I(f"v_fma_f32 {v(vT+2)}, {v(F(1))}, {v(vKf)}, -{v(vMk)}")
        I(f"v_exp_f32 {v(vT+1)}, {v(vT+1)}")
        I(f"v_exp_f32 {v(vT+2)}, {v(vT+2)}")
        I(f"ds_write_b32 {v(vMLw)}, {v(vMk)}")
        I(f"v_cvt_pk_bf16_f32 {v(vT+3)}, {v(vT+1)}, {v(vT+2)}")
        I(f"ds_write_b32 {v(vPLw)}, {v(vT+3)}")
        I(f"ds_read_b128 {vr(vA,4)}, {v(vPLr)}")
        I(f"ds_read_b128 {vr(vA+4,4)}, {v(vPLr)} offset:128")
        I(f"v_add_f32 {v(vPs)}, {v(vT+1)}, {v(vT+2)}")
        for k in (8, 4, 2, 1):
            I(f"v_add_f32_dpp {v(vPs)}, {v(vPs)}, {v(vPs)} row_ror:{k} {DPPALL}")
    def factor_ops(self):
        g = []
        g.append(["s_barrier", f"ds_read_b128 {vr(vT+4,4)}, {v(vCst)} offset:{ML-XL}"])
        g.append([f"v_add_f32_dpp {v(vPs)}, {v(vPs)}, {v(vPs)} row_bcast:15 row_mask:0xa bank_mask:0xf"])
        g.append([f"v_add_f32_dpp {v(vPs)}, {v(vPs)}, {v(vPs)} row_bcast:31 row_mask:0xc bank_mask:0xf"])
        g.append(["s_waitcnt lgkmcnt(0)", f"v_max3_f32 {v(vT+4)}, {v(vT+4)}, {v(vT+5)}, {v(vT+6)}"])
        g.append([f"v_max_f32 {v(vT+4)}, {v(vT+4)}, {v(vT+7)}"])
        g.append([f"v_sub_f32 {v(vF)}, {v(vMk)}, {v(vT+4)}", f"v_mov_b32 {v(vMk)}, {v(vT+4)}"])
        g.append([f"v_exp_f32 {v(vF)}, {v(vF)}"])
        g.append([f"v_mul_f32 {v(vPs)}, {v(vPs)}, {v(vF)}", f"ds_write_b32 {v(vLLw)}, {v(vPs)}"])
        return g
    def pv(self, e, sg):
        self.I(f"v_smfmac_f32_16x16x64_bf16 {vr(vO+4*e,4)}, {vr(vA+4*sg,4)}, {ar(128+16*e+8*sg,8)}, {v(vIdx)}")
    def o_compact(self, e):
        self.I(f"v_add_f32_dpp {v(vT+8+(e>>2))}, {v(vO+4*e)}, {v(vO+4*e+1)} quad_perm:[0,1,2,3] row_mask:{1<<(e&3):#x} bank_mask:0xf")
    def a_end(self):
        I = self.I
        I(f"v_mul_f32 {v(vT+8)}, {v(vT+8)}, {v(vF)}")
        I(f"v_mul_f32 {v(vT+9)}, {v(vT+9)}, {v(vF)}")
        I(f"ds_write2_b32 {v(vOLw)}, {v(vT+8)}, {v(vT+9)} offset0:0 offset1:64")
        w1 = self.lab("ae1"); done = self.lab("aed")
        I(f"s_cmp_lg_u32 s{sW}, 0")
        I("s_waitcnt lgkmcnt(0)"); I("s_barrier")
        I(f"s_cbranch_scc1 {w1}")
        for w in range(4):
            I(f"ds_read_b64 {vr(vT+2*w,2)}, {v(vOLr)} offset:{w*512}")
        I("s_waitcnt lgkmcnt(2)")
        I(f"v_pk_add_f32 {vr(vT,2)}, {vr(vT,2)}, {vr(vT+2,2)}")
        I("s_waitcnt lgkmcnt(0)")
        I(f"v_pk_add_f32 {vr(vT+4,2)}, {vr(vT+4,2)}, {vr(vT+6,2)}")
        I(f"v_pk_add_f32 {vr(vT,2)}, {vr(vT,2)}, {vr(vT+4,2)}")
        I(f"v_cvt_pk_bf16_f32 {v(vT)}, {v(vT)}, {v(vT+1)}")
        I(f"v_min_u32 {v(vT)}, -2, {v(vT)}")
        self.pub_local([f"buffer_store_dword {v(vT)}, {v(vPubA)}, {srd(rGR)}, s{sMA} offen"])
        I(f"s_branch {done}")
        I(f"{w1}:")
        I(f"s_cmp_lg_u32 s{sW}, 1"); I(f"s_cbranch_scc1 {done}")
        I(f"ds_read_b128 {vr(vT+4,4)}, {v(vCst)} offset:{LL-XL}")
        I(f"v_mov_b32 {v(vT)}, {v(vMk)}"); I(f"v_mov_b32 {v(vT+1)}, s{sTag}"); I(f"v_mov_b32 {v(vT+3)}, s{sTag}")
        I("s_waitcnt lgkmcnt(0)")
        I(f"v_pk_add_f32 {vr(vT+4,2)}, {vr(vT+4,2)}, {vr(vT+6,2)}")
        I(f"v_add_f32 {v(vT+2)}, {v(vT+4)}, {v(vT+5)}")
        self.pub_local([f"buffer_store_dwordx4 {vr(vT,4)}, {v(vPubAS)}, {srd(rGR)}, s{sMAS} offen"])
        I(f"{done}:")

    def od_finish(self, rl, smb):
        I = self.I
        done = self.lab("odf")
        I(f"s_cmp_lg_u32 s{sW}, 0")
        I("s_waitcnt lgkmcnt(0)"); I("s_barrier")
        I(f"s_cbranch_scc1 {done}")
        for w in range(4):
            I(f"ds_read_b128 {vr(vT+4*w,4)}, {v(vRLr)} offset:{rl-RLO+w*1024}")
        I("s_waitcnt lgkmcnt(2)")
        I(f"v_pk_add_f32 {vr(vT,2)}, {vr(vT,2)}, {vr(vT+4,2)}")
        I(f"v_pk_add_f32 {vr(vT+2,2)}, {vr(vT+2,2)}, {vr(vT+6,2)}")
        I("s_waitcnt lgkmcnt(0)")
        I(f"v_pk_add_f32 {vr(vT+8,2)}, {vr(vT+8,2)}, {vr(vT+12,2)}")
        I(f"v_pk_add_f32 {vr(vT+10,2)}, {vr(vT+10,2)}, {vr(vT+14,2)}")
        I(f"v_pk_add_f32 {vr(vT,2)}, {vr(vT,2)}, {vr(vT+8,2)}")
        I(f"v_pk_add_f32 {vr(vT+2,2)}, {vr(vT+2,2)}, {vr(vT+10,2)}")
        self.settag(range(vT, vT + 4), sTag)
        I(f"buffer_store_dwordx4 {vr(vT,4)}, {v(vPubO)}, {srd(rWS)}, s{smb} offen sc1")
        I(f"{done}:")

    def o_stage(self):
        I = self.I
        poll = self.lab("o"); rt = self.lab("or"); ok = self.lab("ok")
        self.zero(range(vS, vS + 16))
        I(f"{poll}:")
        I(f"buffer_load_dwordx4 {vr(vA,4)}, {v(vOA)}, {srd(rGR)}, s{sMA} offen sc1")
        I(f"buffer_load_dwordx4 {vr(vA+4,4)}, {v(vOA)}, {srd(rGR)}, s{sMA} offen offset:128 sc1")
        I(f"buffer_load_dwordx4 {vr(vG,4)}, {v(vOS)}, {srd(rGR)}, s{sMAS} offen sc1")
        I(f"buffer_load_dwordx4 {vr(vG+4,4)}, {v(vOS)}, {srd(rGR)}, s{sMAS} offen offset:16 sc1")
        I("s_waitcnt vmcnt(3)")
        I(f"v_max3_u32 {v(vT)}, {v(vA)}, {v(vA+1)}, {v(vA+2)}")
        I("s_waitcnt vmcnt(2)")
        I(f"v_max3_u32 {v(vT)}, {v(vT)}, {v(vA+3)}, {v(vA+4)}")
        I(f"v_max3_u32 {v(vT+1)}, {v(vA+5)}, {v(vA+6)}, {v(vA+7)}")
        I(f"v_max_u32 {v(vT)}, {v(vT)}, {v(vT+1)}")
        I(f"v_cmp_eq_u32 {sp(sAny)}, -1, {v(vT)}")
        I("s_waitcnt vmcnt(0)")
        self.tagchk(vT + 1, (vG + 1, vG + 3, vG + 5, vG + 7), sTag, first=True)
        I(f"v_cmp_ne_u32 vcc, 0, {v(vT+1)}")
        I(f"s_or_b64 {sp(sAny)}, {sp(sAny)}, vcc")
        I(f"s_cbranch_scc1 {rt}")
        I(f"{ok}:")
        self.retry(rt, poll, ok)
        M0_, L0, M1_, L1 = vG, vG + 2, vG + 4, vG + 6
        w0, w1, mx = vT + 8, vT + 9, vT + 10
        side = [[f"v_max_f32 {v(mx)}, {v(M0_)}, {v(M1_)}"],
                [f"v_sub_f32 {v(w0)}, {v(M0_)}, {v(mx)}", f"v_sub_f32 {v(w1)}, {v(M1_)}, {v(mx)}"],
                [f"v_exp_f32 {v(w0)}, {v(w0)}"], [f"v_exp_f32 {v(w1)}, {v(w1)}"],
                [f"v_mul_f32 {v(mx)}, {v(L0)}, {v(w0)}", f"v_fmac_f32 {v(mx)}, {v(L1)}, {v(w1)}"],
                [f"v_rcp_f32 {v(mx)}, {v(mx)}"], [],
                [f"v_mul_f32 {v(w0)}, {v(w0)}, {v(mx)}", f"v_mul_f32 {v(w1)}, {v(w1)}, {v(mx)}"]]
        k = 0
        for t in range(4):
            for sg in range(2):
                I(f"v_smfmac_f32_16x16x64_bf16 {vr(vS+4*t,4)}, {vr(vA+4*sg,4)}, {vr(WO+16*t+8*sg,8)}, {v(vIdx)}")
                for x in side[k]: I(x)
                k += 1
        for t in range(4):
            a = vS + 4 * t
            I(f"v_add_f32 {v(a)}, {v(a)}, {v(a+1)}")
            I(f"v_add_f32 {v(a+2)}, {v(a+2)}, {v(a+3)}")
            I(f"v_mul_f32 {v(a)}, {v(a)}, {v(w0)}")
            I(f"v_fmac_f32 {v(a)}, {v(a+2)}, {v(w1)}")
            I(f"ds_write_b32 {v(vRLw)}, {v(a)} offset:{t*64}")
        self.od_finish(RLO, sMO)

    def d_stage(self):
        I = self.I
        poll = self.lab("d"); rt = self.lab("dr"); ok = self.lab("dk"); skip = self.lab("ds")
        self.zero(range(vS, vS + 16))
        I(f"s_cmp_eq_u32 s{sHasG}, 0"); I(f"s_cbranch_scc1 {skip}")
        I(f"{poll}:")
        I(f"buffer_load_dwordx4 {vr(vA,4)}, {v(vDA)}, {srd(rGR)}, s{sMH} offen sc1")
        I("s_waitcnt vmcnt(0)")
        I(f"v_max3_u32 {v(vT)}, {v(vA)}, {v(vA+1)}, {v(vA+2)}")
        I(f"v_max_u32 {v(vT)}, {v(vT)}, {v(vA+3)}")
        I(f"v_cmp_eq_u32 vcc, -1, {v(vT)}")
        I(f"s_cbranch_vccnz {rt}")
        I(f"{ok}:")
        self.retry(rt, poll, ok, None)
        for t in range(4):
            I(f"v_smfmac_f32_16x16x64_bf16 {vr(vS+4*t,4)}, {vr(vA,4)}, {vr(WD+8*t,8)}, {v(vIdx)}")
        I(f"{skip}:")
        for t in range(4):
            a = vS + 4 * t
            I(f"v_add_f32 {v(a)}, {v(a)}, {v(a+1)}")
            I(f"ds_write_b32 {v(vRLw)}, {v(a)} offset:{RLD-RLO+t*64}")
        self.od_finish(RLD, sMD)

    def h_stage(self):
        I = self.I
        poll = self.lab("h"); rt = self.lab("hr"); ok = self.lab("hk")
        I(f"{poll}:")
        self.g5(vGH, vGHS)
        I(f"s_cbranch_vccnz {rt}")
        I(f"{ok}:")
        self.retry(rt, poll, ok)
        I(f"v_rcp_f32 {v(vT+10)}, {v(vT+10)}")
        I(f"v_max_f32 {v(vT)}, 0, {v(vT)}")
        I(f"v_max_f32 {v(vT+2)}, 0, {v(vT+2)}")
        I(f"v_mul_f32 {v(vT+1)}, {v(vT+1)}, {v(vT+10)}")
        I(f"v_mul_f32 {v(vT+3)}, {v(vT+3)}, {v(vT+10)}")
        I(f"v_mul_f32 {v(vT)}, {v(vT)}, {v(vT+1)}")
        I(f"v_mul_f32 {v(vT+2)}, {v(vT+2)}, {v(vT+3)}")
        I(f"v_cvt_pk_bf16_f32 {v(vT)}, {v(vT)}, {v(vT+2)}")
        I(f"v_min_u32 {v(vT)}, -2, {v(vT)}")
        self.pub_local([f"buffer_store_dword {v(vT)}, {v(vPubH)}, {srd(rGR)}, s{sMH} offen"])

    def make_srd(self, r, ptr, off_s, nrec):
        I = self.I
        I(f"s_add_u32 s{r}, s{ptr}, s{off_s}"); I(f"s_addc_u32 s{r+1}, s{ptr+1}, 0")
        I(f"s_mov_b32 s{r+2}, {nrec}"); I(f"s_mov_b32 s{r+3}, 0x20000")

    def build(self):
        I = self.I; opt = self.opt
        DEPTH = opt.get('depth', 14)
        t0, t1, t2, t3, t4, t5, t6, t7 = range(vT, vT + 8)
        vN, vC, vOob, vSp = 251, 252, 253, 254
        I(f"{NAME}_kernel:")
        if self.prof or opt.get('spin'): I("s_memrealtime s[94:95]"); I("s_mov_b32 s14, 0")
        I("s_load_dwordx16 s[16:31], s[0:1], 0"); I("s_load_dwordx8 s[32:39], s[0:1], 64")
        I("s_cmp_ge_u32 s2, 256"); I("s_cbranch_scc1 L_end")
        I(f"s_getpc_b64 {sp(sAny)}")
        I("L_pc:")
        I(f"v_lshlrev_b32 {v(t5)}, 4, v0"); I(f"s_lshr_b32 s{sT2}, s2, 3"); I(f"s_lshl_b32 s{sT2}, s{sT2}, 12")
        I(f"v_add_u32 {v(t4)}, s{sT2}, {v(t5)}")
        I(f"v_lshrrev_b32 {v(t0)}, 6, v0")
        I(f"s_cmp_ge_u32 s{sT2}, L_codeend-L_pc-4095"); I("s_cbranch_scc1 L_nopf")
        I(f"global_load_dwordx4 {vr(vG,4)}, {v(t4)}, {sp(sAny)}")
        I("L_nopf:")
        I(f"v_readfirstlane_b32 s{sW}, {v(t0)}"); I(f"v_and_b32 {v(vL)}, 63, v0")
        I(f"s_and_b32 s{sX}, s2, 7"); I(f"s_lshr_b32 s{sHH}, s2, 6"); I(f"s_bfe_u32 s{sSub}, s2, 0x30003")
        I(f"s_lshl_b32 s{sH}, s{sX}, 2"); I(f"s_add_u32 s{sH}, s{sH}, s{sHH}")
        I(f"s_lshl_b32 s{sRing}, s{sW}, 15")
        I(f"s_lshr_b32 s{sT0}, s{sSub}, 1"); I(f"s_lshl_b32 s{sT0}, s{sT0}, 5"); I(f"s_add_u32 s{sT0}, s{sT0}, s{sH}")
        I(f"s_lshl_b32 s{sT0}, s{sT0}, 3"); I(f"s_and_b32 s{sT1}, s{sSub}, 1"); I(f"s_add_u32 s{sT0}, s{sT0}, s{sT1}")
        I(f"s_add_u32 s{sT0}, s{sT0}, 6"); I(f"s_lshl_b32 s{sT0}, s{sT0}, 17")
        I(f"v_and_b32 {v(vN)}, 15, v0"); I(f"v_bfe_u32 {v(vC)}, v0, 4, 2")
        I(f"v_bfe_u32 {v(t3)}, v0, 4, 1"); I(f"v_bfe_u32 {v(t4)}, v0, 5, 1"); I(f"v_lshl_or_b32 {v(t3)}, {v(t3)}, 1, {v(t4)}")
        I(f"v_xor_b32 {v(t3)}, {v(t3)}, {v(vN)}"); I(f"v_lshlrev_b32 {v(t3)}, 4, {v(t3)}")
        I(f"v_lshl_or_b32 {v(vKV)}, {v(vC)}, 8, {v(t3)}")
        for k in (1, 2, 3): I(f"v_xor_b32 {v(vKV+k)}, {64*k}, {v(vKV)}")
        I(f"v_lshlrev_b32 {v(t3)}, 1, {v(vC)}"); I(f"v_xor_b32 {v(t3)}, {v(t3)}, {v(vN)}"); I(f"v_lshlrev_b32 {v(t3)}, 4, {v(t3)}")
        I(f"v_lshl_or_b32 {v(vTo)}, {v(vC)}, 13, {v(t3)}"); I(f"v_xor_b32 {v(vTo+1)}, 128, {v(vTo)}")
        I(f"s_lshl_b32 s{sT1}, s{sSub}, 20"); I(f"s_lshl_b32 s{sT2}, s{sH}, 8"); I(f"s_add_u32 s{sT1}, s{sT1}, s{sT2}")
        I(f"s_add_u32 m0, s{sRing}, {24*1024}"); I(f"s_lshl_b32 s{sOff}, s{sW}, 18")
        I(f"s_mov_b32 s{rK+2}, 131072"); I(f"s_mov_b32 s{rK+3}, 0x20000")
        I(f"s_mov_b32 s{rT+2}, {0 if opt.get('nowq') else 127*8192+256}"); I(f"s_mov_b32 s{rT+3}, 0x20000")
        I(f"s_mov_b32 s{rWS+2}, {WS_USED}"); I(f"s_mov_b32 s{rWS+3}, 0x20000")
        I(f"s_getreg_b32 s{sXcc}, hwreg(HW_REG_XCC_ID, 0, 4)")
        I(f"s_mul_i32 s{rGR}, s{sX}, {GSTRIDE}"); I(f"s_mov_b32 s{rGR+2}, {GSTRIDE}"); I(f"s_mov_b32 s{rGR+3}, 0x20000")
        I(f"v_lshlrev_b32 {v(t6)}, 4, {v(vL)}")
        if self.prof: I(f"s_mov_b32 s{sStamp}, 0"); I(f"v_mov_b32 {v(vStampV)}, 0")
        I(f"s_cmp_lt_u32 s{sSub}, 5"); I(f"s_cselect_b32 s{sRole}, 0, 1")
        I("s_waitcnt lgkmcnt(0)")
        if self.prof: I(f"v_writelane_b32 {v(vStampV)}, s94, 63")
        self.stamp()
        I(f"s_add_u32 s{rK}, s{pK}, s{sT0}"); I(f"s_addc_u32 s{rK+1}, s{pK+1}, 0")
        I(f"s_mov_b32 s{rWS}, s{pWS}"); I(f"s_mov_b32 s{rWS+1}, s{pWS+1}")
        I(f"s_add_u32 s{rGR}, s{pWS}, s{rGR}"); I(f"s_addc_u32 s{rGR+1}, s{pWS+1}, 0")
        def flag():
            if opt.get('noflag'): return
            I(f"s_cmp_lg_u32 s{sW}, 3"); nf = self.lab("nf"); I(f"s_cbranch_scc1 {nf}")
            I(f"s_lshr_b32 s{sT3}, s2, 3"); I(f"s_lshl_b32 s{sT3}, s{sT3}, 7"); I(f"s_add_u32 s{sT3}, s{sT3}, {MB_X}")
            I(f"v_mov_b32 {v(vG+20)}, s{sXcc}"); I(f"v_mov_b32 {v(vG+21)}, s{sTag}"); I(f"v_mov_b32 {v(vG+22)}, s{sXcc}"); I(f"v_mov_b32 {v(vG+23)}, s{sTag}")
            I(f"v_lshlrev_b32 {v(vG+24)}, 4, {v(vL)}")
            I("s_mov_b64 exec, 0xff")
            I(f"buffer_store_dwordx4 {vr(vG+20,4)}, {v(vG+24)}, {srd(rGR)}, s{sT3} offen sc1")
            I("s_mov_b64 exec, -1")
            I(f"{nf}:")
        def touch_v():
            if opt.get('notouchv'): return
            nf = self.lab("tv")
            I(f"s_cmp_lg_u32 s{sW}, 2"); I(f"s_cbranch_scc1 {nf}")
            I(f"v_and_b32 {v(t5)}, 1, {v(vL)}"); I(f"v_lshl_add_u32 {v(t5)}, {v(t5)}, 16, s{sT0}")
            I(f"global_load_dword {v(vG+26)}, {v(t5)}, {sp(pV)} nt")
            I(f"{nf}:")
        def common():
            I(f"s_add_u32 s{sAny}, s{pWS}, {MB_E}"); I(f"s_addc_u32 s{sAny+1}, s{pWS+1}, 0")
            I(f"s_load_dword s{sTag}, {sp(sAny)}, 0")
            self.make_srd(rV, pV, sT0, 131072)
            I(f"v_mov_b32 {v(vOob)}, {OOB:#x}"); I(f"v_mov_b32 {v(vCst)}, {XL}")
            I(f"s_mov_b32 s{sMR}, {MB_R}"); I(f"s_mov_b32 s{sCnt}, 0"); I("v_mov_b32 v0, 0xff")
            I(f"s_mov_b32 s{sC640}, 0x3acccccd")
            I(f"s_mov_b32 s{sEps}, 0x3727c5ac")
            I(f"v_and_b32 {v(t3)}, 1, {v(vL)}"); I(f"v_mul_u32_u24 {v(vIdx)}, 0xaaaa, {v(t3)}"); I(f"v_add_u32 {v(vIdx)}, 0x4444, {v(vIdx)}")
            I(f"v_lshlrev_b32 {v(vSp)}, 4, {v(t3)}"); I(f"v_lshl_or_b32 {v(vSp)}, {v(vC)}, 5, {v(vSp)}")
        if opt.get('pre'):
            nl = (GSTRIDE - MB_AS0) // 128
            I(f"s_lshr_b32 s{sT2}, s2, 3"); I(f"s_lshl_b32 s{sT2}, s{sT2}, 2"); I(f"s_add_u32 s{sT2}, s{sT2}, s{sW}"); I(f"s_lshl_b32 s{sT2}, s{sT2}, 9")
            I(f"s_add_u32 s{sT2}, s{sT2}, {MB_AS0}"); I(f"v_and_b32 {v(t5)}, 3, {v(vL)}"); I(f"v_lshlrev_b32 {v(t5)}, 7, {v(t5)}")
            assert nl <= 512
            I(f"buffer_load_dword {v(vG+27)}, {v(t5)}, {srd(rGR)}, s{sT2} offen")
            if opt['pre'] >= 2:
                n2 = (MB_E - MB_O0) // 128
                assert n2 <= 4096
                I(f"s_lshl_b32 s{sT2}, s2, 2"); I(f"s_add_u32 s{sT2}, s{sT2}, s{sW}"); I(f"s_lshl_b32 s{sT2}, s{sT2}, 9"); I(f"s_add_u32 s{sT2}, s{sT2}, {MB_O0}")
                I(f"s_cmp_ge_u32 s{sT2}, {MB_E}"); I("s_cbranch_scc1 L_nopre")
                I(f"buffer_load_dword {v(vG+28)}, {v(t5)}, {srd(rWS)}, s{sT2} offen")
                I("L_nopre:")
        I(f"s_cmp_eq_u32 s{sRole}, {7 if opt.get('noqg') else 0}"); I("s_cbranch_scc1 L_q0")
        for i in range(4): self.item(i)
        I(f"s_mul_i32 s{sCB}, s{sHH}, 3"); I(f"s_add_u32 s{sCB}, s{sCB}, s{sSub}"); I(f"s_sub_u32 s{sCB}, s{sCB}, 5")
        touch_v()
        I(f"s_cmp_lt_u32 s{sCB}, {99 if opt.get('notouch') else 10}"); I("s_cbranch_scc1 L_notouch")
        assert Z2 <= 8 * 3072 and Z2 % 1024 == 0
        I(f"s_sub_u32 s{sT2}, s{sCB}, 10"); I(f"s_lshl_b32 s{sT2}, s{sT2}, 2"); I(f"s_add_u32 s{sT2}, s{sT2}, s{sW}"); I(f"s_mul_i32 s{sT2}, s{sT2}, 3072")
        for k in range(4): I(f"v_mov_b32 {v(vG+4+k)}, -1")
        I(f"s_mov_b32 s{rGR+2}, {Z2}")
        for k in range(3): I(f"buffer_store_dwordx4 {vr(vG+4,4)}, {v(t6)}, {srd(rGR)}, s{sT2} offen offset:{k*1024} sc1")
        I(f"s_mov_b32 s{rGR+2}, {GSTRIDE}")
        I(f"v_lshlrev_b32 {v(t5)}, 17, {v(vL)}")
        t1l = self.lab("tw"); t3l = self.lab("tw")
        I(f"s_cmp_eq_u32 s{sW}, 1"); I(f"s_cbranch_scc1 {t1l}"); I(f"s_cmp_eq_u32 s{sW}, 3"); I(f"s_cbranch_scc1 {t3l}"); I(f"s_cmp_eq_u32 s{sW}, 2"); I("s_cbranch_scc1 L_notouch")
        I(f"v_min_u32 {v(t7)}, {4096*1280-4}, {v(t5)}"); I(f"global_load_dword {v(vG+8)}, {v(t7)}, {sp(pWO)}")
        I(f"v_min_u32 {v(t7)}, {1728*1280-4}, {v(t5)}"); I(f"global_load_dword {v(vG+9)}, {v(t7)}, {sp(pWD)}")
        I("s_branch L_notouch")
        I(f"{t1l}:")
        I(f"v_min_u32 {v(t7)}, {640*3456-4}, {v(t5)}"); I(f"global_load_dword {v(vG+8)}, {v(t7)}, {sp(pWG)}"); I(f"global_load_dword {v(vG+9)}, {v(t7)}, {sp(pWU)}")
        I("s_branch L_notouch")
        I(f"{t3l}:")
        I(f"v_min_u32 {v(t7)}, {WS_USED-4}, {v(t5)}"); I(f"v_mov_b32 {v(t5)}, 0")
        I(f"global_load_dword {v(vG+8)}, {v(t7)}, {sp(pWS)}"); I(f"global_load_dword {v(vG+9)}, {v(t5)}, {sp(pOUT)}")
        I("L_notouch:")
        for i in range(4, 16): self.item(i)
        common()
        I("s_waitcnt vmcnt(12) lgkmcnt(0)"); I(f"s_add_u32 s{sTag}, s{sTag}, 1"); I(f"s_mov_b32 s{sSt}, s{sTag}"); I("s_barrier")
        flag()
        I("s_branch L_stream")
        I("L_q0:")
        I(f"s_add_u32 s{rT}, s{pWQ}, s{sT1}"); I(f"s_addc_u32 s{rT+1}, s{pWQ+1}, 0")
        I(f"s_mul_i32 s{sT2}, s{sW}, 1280"); I(f"v_add_u32 {v(t5)}, s{sT2}, {v(t6)}"); I(f"v_lshl_add_u32 {v(t7)}, {v(vL)}, 2, s{sT2}")
        if not opt.get('nox'): I(f"global_load_dwordx4 {vr(vG+4,4)}, {v(t5)}, {sp(pX)}"); I(f"global_load_dword {v(vG+8)}, {v(t7)}, {sp(pX)} offset:1024")
        I(f"v_and_b32 {v(t3)}, 31, {v(vL)}"); I(f"v_lshlrev_b32 {v(t3)}, 3, {v(t3)}"); I(f"v_lshl_or_b32 {v(t3)}, {v(t4)}, 2, {v(t3)}")
        I(f"s_lshl_b32 s{sT3}, s{sSub}, 8"); I(f"s_add_u32 s{sT2}, s{sT2}, s{sT3}")
        I(f"v_add_u32 {v(t3)}, s{sT2}, {v(t3)}")
        if not opt.get('nox'): I(f"global_load_dword {v(vXpk)}, {v(t3)}, {sp(pX)}")
        if opt.get('wqlin'):
            I(f"s_sub_u32 s{rT}, s{rK}, 0x40000"); I(f"s_subb_u32 s{rT+1}, s{rK+1}, 0"); I(f"s_lshl_b32 s{sOff}, s{sW}, 10")
            for ii in range(8): self.dma(vKV, rT, None, 4096)
        else:
          for ii in range(8):
            self.dma(vTo + ((ii >> 1) & 1), rT, None, 32768)
        self.vm = []
        for i in range(4): self.item(i)
        touch_v()
        common()
        I(f"s_lshl_b32 s{sT2}, s{sHH}, 2"); I(f"s_add_u32 s{sT2}, s{sT2}, s{sW}")
        I(f"s_mul_i32 s{sT3}, s{sT2}, 3200"); I(f"s_lshl_b32 s{sT1}, s{sSub}, 7"); I(f"s_add_u32 s{sT3}, s{sT3}, s{sT1}")
        I(f"v_mul_u32_u24 {v(t3)}, 640, {v(vC)}"); I(f"v_lshl_add_u32 {v(t4)}, {v(vN)}, 3, s{sT3}")
        I(f"v_add_u32 {v(vPub)}, {v(t3)}, {v(t4)}")
        I(f"v_lshrrev_b32 {v(t5)}, 5, {v(vL)}"); I(f"v_bfe_u32 {v(t3)}, {v(vL)}, 2, 3"); I(f"v_lshl_or_b32 {v(t3)}, {v(t3)}, 1, {v(t5)}")
        I(f"v_and_b32 {v(t5)}, 3, {v(vL)}"); I(f"v_lshl_or_b32 {v(t3)}, {v(t3)}, 2, {v(t5)}")
        I(f"s_mul_i32 s{sT3}, s{sW}, 272"); I(f"s_add_u32 s{sT3}, s{sT3}, {XL}"); I(f"v_lshl_add_u32 {v(vXLw)}, {v(t3)}, 2, s{sT3}")
        I(f"v_and_b32 {v(t5)}, 2, {v(vL)}"); I(f"v_cmp_eq_u32 vcc, 0, {v(t5)}"); I(f"v_lshrrev_b32 {v(t3)}, 2, {v(vN)}")
        I(f"v_mov_b32 {v(t6)}, 0x3f803f80"); I(f"v_lshl_add_u32 {v(t5)}, {v(vL)}, 2, {v(vCst)}")
        I(f"v_cndmask_b32 {v(t3)}, 4, {v(t3)}, vcc"); I(f"v_mul_u32_u24 {v(t3)}, 272, {v(t3)}"); I(f"v_add3_u32 {v(vXLr)}, {v(t3)}, {v(vSp)}, {v(vCst)}")
        I(f"ds_write_b32 {v(t5)}, {v(t6)} offset:{4*272}")
        wa = vG + 16
        I(f"v_bfe_u32 {v(t3)}, {v(vL)}, 1, 4"); I(f"s_lshl_b32 s{sT3}, s{sW}, 2"); I(f"v_xor_b32 {v(t3)}, s{sT3}, {v(t3)}")
        I(f"v_and_b32 {v(t4)}, 1, {v(vL)}"); I(f"v_lshlrev_b32 {v(t4)}, 3, {v(t4)}"); I(f"v_bfe_u32 {v(t0)}, {v(vL)}, 2, 2")
        I(f"v_lshl_add_u32 {v(t3)}, {v(t3)}, 4, {v(t4)}"); I(f"v_lshl_add_u32 {v(t3)}, {v(t0)}, 8, {v(t3)}"); I(f"v_lshl_add_u32 {v(t3)}, {v(vC)}, 11, {v(t3)}")
        I(f"v_add_u32 {v(wa)}, {24*1024}, {v(t3)}"); I(f"v_xor_b32 {v(wa+1)}, 32, {v(wa)}")
        I(f"v_add_u32 {v(wa+2)}, 0x10000, {v(wa)}"); I(f"v_add_u32 {v(wa+3)}, 0x10000, {v(wa+1)}")
        self.zero(range(vS, vS + 8))
        for i in range(4, 8): self.item(i)
        I("s_waitcnt vmcnt(16)")
        I(f"v_mov_b32 {v(t0)}, 0"); I(f"v_mov_b32 {v(t1)}, 0")
        for k in range(5):
            I(f"v_dot2_f32_bf16 {v(t0)}, {v(vG+4+k)}, {v(t6)}, {v(t0)}"); I(f"v_dot2_f32_bf16 {v(t1)}, {v(vG+4+k)}, {v(vG+4+k)}, {v(t1)}")
        self.x_unpack()
        I(f"v_permlane32_swap_b32 {v(t0)}, {v(t1)}")
        I(f"v_add_f32 {v(t0)}, {v(t0)}, {v(t1)}")
        for k in (8, 4, 2, 1):
            I(f"v_add_f32_dpp {v(t0)}, {v(t0)}, {v(t0)} row_ror:{k} {DPPALL}")
        I(f"v_add_f32_dpp {v(t0)}, {v(t0)}, {v(t0)} row_bcast:15 row_mask:0xa bank_mask:0xf")
        I(f"v_mul_f32 {v(t0)}, s{sC640}, {v(t0)}")
        I(f"v_readlane_b32 s{sT2}, {v(t0)}, 31"); I(f"v_readlane_b32 s{sT3}, {v(t0)}, 63")
        I(f"v_mov_b32 {v(vT+8)}, s{sT2}"); I(f"v_mov_b32 {v(vT+9)}, s{sT3}")
        self.g5_var()
        I(f"v_rsq_f32 {v(vT+10)}, {v(vT+10)}")
        I(f"v_sub_f32 {v(t0)}, {v(vXres)}, {v(vT+8)}"); I(f"v_sub_f32 {v(t1)}, {v(vXres+1)}, {v(vT+8)}")
        I(f"v_mul_f32 {v(t0)}, {v(t0)}, {v(vT+10)}"); I(f"v_mul_f32 {v(t1)}, {v(t1)}, {v(vT+10)}")
        I(f"v_cvt_pk_bf16_f32 {v(t0)}, {v(t0)}, {v(t1)}")
        I(f"ds_write_b32 {v(vXLw)}, {v(t0)}")
        for i in range(8, 12): self.item(i)
        I("s_waitcnt vmcnt(12) lgkmcnt(0)"); I("s_barrier")
        for tt in range(2):
            for kk in range(4):
                for rd in range(2):
                    I(f"ds_read_b64_tr_b16 {vr(WQ+16*tt+4*kk+2*rd,2)}, {v(wa+tt+2*(kk>>1))} offset:{(kk&1)*32768+rd*1024}")
        I(f"ds_read_b128 {vr(vA,4)}, {v(vXLr)}"); I(f"ds_read_b128 {vr(vA+4,4)}, {v(vXLr)} offset:128")
        for i in range(12, 14): self.item(i)
        I(f"s_add_u32 s{sTag}, s{sTag}, 1"); I(f"s_mov_b32 s{sSt}, s{sTag}")
        flag()
        I("s_waitcnt lgkmcnt(0)")
        for sg in range(2):
            for tt in range(2):
                I(f"v_smfmac_f32_16x16x64_bf16 {vr(vS+4*tt,4)}, {vr(vA+4*sg,4)}, {vr(WQ+16*tt+8*sg,8)}, {v(vIdx)}")
        I("s_barrier")
        I(f"v_and_b32 {v(t5)}, 1, {v(vL)}"); I(f"v_cmp_eq_u32 vcc, 0, {v(t5)}")
        I(f"v_add_f32 {v(vT)}, {v(vS)}, {v(vS+1)}"); I(f"v_add_f32 {v(vT+1)}, {v(vS+4)}, {v(vS+5)}")
        I(f"v_cndmask_b32 {v(t5)}, {v(vOob)}, {v(vPub)}, vcc")
        self.settag((vT, vT + 1), sSt)
        I(f"v_mov_b32_dpp {v(vT+2)}, {v(vT)} quad_perm:[1,1,3,3] {DPPALL}"); I(f"v_mov_b32_dpp {v(vT+3)}, {v(vT+1)} quad_perm:[1,1,3,3] {DPPALL}")
        if not opt.get('noq0'): I(f"buffer_store_dwordx4 {vr(vT,4)}, {v(t5)}, {srd(rGR)}, s{sMR} offen" + ("" if opt.get('plainq0') else " sc1"))
        for i in range(14, 16): self.item(i)
        I("L_stream:")
        self.mark(3)
        self.stamp()

        def su_k():
            I(f"v_and_b32 {v(t3)}, 1, {v(vN)}"); I(f"v_bfe_u32 {v(t4)}, {v(vN)}, 1, 1"); I(f"v_lshl_or_b32 {v(t3)}, {v(t3)}, 1, {v(t4)}")
            I(f"v_and_or_b32 {v(t3)}, {v(vN)}, 12, {v(t3)}"); I(f"v_xor_b32 {v(t3)}, {v(t3)}, {v(vC)}")
            I(f"v_lshl_add_u32 {v(t3)}, {v(t3)}, 4, s{sRing}"); I(f"v_lshl_add_u32 {v(vRK)}, {v(vN)}, 8, {v(t3)}")
            for k in (1, 2, 3): I(f"v_xor_b32 {v(vRK+k)}, {64*k}, {v(vRK)}")
        def su_const():
            I(f"s_mov_b32 s{sFast}, 0"); I(f"s_mov_b32 s{sLayer}, 0")
            I(f"s_mov_b32 s{sKs}, 0x3e0293ee")
            I(f"s_mov_b32 s{sMA}, {MB_A0}"); I(f"s_mov_b32 s{sMAS}, {MB_AS0}"); I(f"s_mov_b32 s{sMO}, {MB_O0}")
            I(f"s_mov_b32 s{sMD}, {MB_D0}"); I(f"s_mov_b32 s{sMH}, {MB_H0}"); I(f"s_mov_b32 s{sMF}, {MB_F}")
            I(f"v_and_b32 {v(vFa)}, 31, {v(vL)}"); I(f"v_lshlrev_b32 {v(vFa)}, 7, {v(vFa)}"); I(f"v_add_u32 {v(vFa)}, {MB_X}, {v(vFa)}")
            self.zero([vS + 4 * t + k for t in range(16) for k in range(2)])
        def su_att():
            I(f"v_add_u32 {v(vQLr)}, {QL}, {v(vSp)}")
            I(f"s_lshl_b32 s{sT1}, s{sW}, 8"); I(f"s_add_u32 s{sT1}, s{sT1}, {PL}")
            I(f"v_add_u32 {v(vPLr)}, s{sT1}, {v(vSp)}")
            I(f"v_and_b32 {v(t3)}, 1, {v(vL)}"); I(f"v_and_b32 {v(t4)}, 56, {v(vL)}"); I(f"v_lshl_or_b32 {v(t4)}, {v(t3)}, 2, {v(t4)}")
            I(f"v_bfe_u32 {v(t5)}, {v(vL)}, 1, 2"); I(f"v_or_b32 {v(t4)}, {v(t4)}, {v(t5)}")
            I(f"v_lshl_add_u32 {v(vPLw)}, {v(t4)}, 2, s{sT1}")
            I(f"s_lshl_b32 s{sT1}, s{sHH}, 3"); I(f"s_add_u32 s{sT1}, s{sT1}, s{sSub}"); I(f"s_lshl_b32 s{sT1}, s{sT1}, 8")
            I(f"v_lshl_add_u32 {v(vPubA)}, {v(t4)}, 2, s{sT1}")
            I(f"v_and_b32 {v(t5)}, 7, {v(t4)}"); I(f"v_bfe_u32 {v(t0)}, {v(vL)}, 3, 2"); I(f"v_lshl_or_b32 {v(t5)}, {v(t0)}, 4, {v(t5)}")
            I(f"v_cmp_gt_u32 vcc, 32, {v(vL)}")
            I(f"v_lshlrev_b32 {v(t5)}, 2, {v(t5)}"); I(f"v_add_u32 {v(t5)}, {QL}, {v(t5)}"); I(f"v_mov_b32 {v(vQLw)}, {JUNK}")
            I(f"v_cndmask_b32 {v(vQLw)}, {v(vQLw)}, {v(t5)}, vcc")
            I(f"s_lshl_b32 s{sT1}, s{sHH}, 9"); I(f"s_lshl_b32 s{sT3}, s{sSub}, 5"); I(f"s_add_u32 s{sT1}, s{sT1}, s{sT3}")
            I(f"v_and_b32 {v(t5)}, 7, {v(t4)}"); I(f"v_lshl_add_u32 {v(t5)}, {v(t5)}, 2, s{sT1}"); I(f"v_lshl_add_u32 {v(t5)}, {v(t0)}, 7, {v(t5)}")
            I(f"v_cndmask_b32 {v(vPubH)}, {v(vOob)}, {v(t5)}, vcc")
            I(f"s_lshr_b32 s{sT1}, s{sSub}, 1"); I(f"v_mov_b32 {v(t5)}, s{sT1}"); I(f"v_cndmask_b32 {v(t5)}, 4, {v(t5)}, vcc")
            I(f"v_mad_u32_u24 {v(t5)}, {v(t0)}, 5, {v(t5)}"); I(f"v_mul_u32_u24 {v(t5)}, 640, {v(t5)}")
            I(f"v_and_b32 {v(t3)}, 7, {v(vL)}"); I(f"s_mul_i32 s{sT3}, s{sHH}, 12800"); I(f"v_lshl_add_u32 {v(t3)}, {v(t3)}, 4, s{sT3}")
            I(f"v_add_u32 {v(vGA)}, {v(t5)}, {v(t3)}")
            I(f"v_cndmask_b32 {v(vQ0)}, {v(vOob)}, {v(vGA)}, vcc")
            I(f"v_cndmask_b32 {v(t5)}, 4, {v(t0)}, vcc"); I(f"v_mul_u32_u24 {v(t5)}, 640, {v(t5)}")
            I(f"s_mul_i32 s{sT3}, s{sSub}, 3200"); I(f"v_add3_u32 {v(vGH)}, {v(t5)}, {v(t3)}, s{sT3}")
            I(f"s_lshl_b32 s{sT3}, s{sHH}, 9"); I(f"s_add_u32 s{sT3}, s{sT3}, {MB_S}"); I(f"v_lshrrev_b32 {v(t5)}, 5, {v(vL)}"); I(f"v_lshl_add_u32 {v(t5)}, {v(t5)}, 6, s{sT3}")
            I(f"v_lshl_add_u32 {v(vGHS)}, {v(t0)}, 7, {v(t5)}")
            I(f"s_lshl_b32 s{sT1}, s{sT1}, 7"); I(f"v_add_u32 {v(vGAS)}, s{sT1}, {v(t5)}")
        def su_att2():
            I(f"s_lshl_b32 s{sT1}, s{sHH}, 7"); I(f"s_lshl_b32 s{sT3}, s{sSub}, 4"); I(f"s_add_u32 s{sT1}, s{sT1}, s{sT3}")
            I(f"v_cmp_eq_u32 vcc, 0, {v(vL)}"); I(f"v_mov_b32 {v(t5)}, s{sT1}"); I(f"v_cndmask_b32 {v(vPubAS)}, {v(vOob)}, {v(t5)}, vcc")
            I(f"s_lshl_b32 s{sT1}, s{sW}, 2"); I(f"s_add_u32 s{sT3}, s{sT1}, {ML}"); I(f"v_mov_b32 {v(vMLw)}, s{sT3}")
            I(f"v_cmp_eq_u32 vcc, 63, {v(vL)}")
            I(f"s_add_u32 s{sT3}, s{sT1}, {LL}"); I(f"v_mov_b32 {v(t5)}, s{sT3}"); I(f"v_mov_b32 {v(vLLw)}, {JUNK}")
            I(f"v_cndmask_b32 {v(vLLw)}, {v(vLLw)}, {v(t5)}, vcc")
            I(f"s_lshl_b32 s{sT1}, s{sW}, 9"); I(f"s_add_u32 s{sT1}, s{sT1}, {OL}"); I(f"v_lshl_add_u32 {v(vOLw)}, {v(vL)}, 2, s{sT1}")
            I(f"v_lshlrev_b32 {v(vOLr)}, 3, {v(vL)}"); I(f"v_add_u32 {v(vOLr)}, {OL}, {v(vOLr)}")
        def su_v():
            I(f"v_bfe_u32 {v(t0)}, {v(vL)}, 2, 2")
            I(f"v_bfe_u32 {v(t3)}, {v(vL)}, 3, 1")
            I(f"v_bfe_u32 {v(t4)}, {v(vL)}, 2, 1")
            I(f"v_lshl_add_u32 {v(t5)}, {v(vC)}, 2, {v(t3)}"); I(f"v_lshl_add_u32 {v(t5)}, {v(t4)}, 4, {v(t5)}")
            I(f"v_lshl_add_u32 {v(t5)}, {v(t5)}, 8, s{sRing}")
            I(f"v_bfe_u32 {v(vRV)}, {v(vL)}, 1, 1")
            I(f"v_lshl_or_b32 {v(vRV)}, {v(t3)}, 1, {v(vRV)}")
            I(f"v_bfe_u32 {v(vRV+1)}, {v(vL)}, 4, 1"); I(f"v_lshl_or_b32 {v(vRV)}, {v(vRV+1)}, 2, {v(vRV)}")
            I(f"v_mov_b32 {v(vRT)}, {v(vRV)}")
            I(f"v_lshl_or_b32 {v(vRV)}, {v(t4)}, 3, {v(vRV)}")
            I(f"v_and_b32 {v(t4)}, 1, {v(vL)}"); I(f"v_lshlrev_b32 {v(t4)}, 3, {v(t4)}")
            I(f"v_lshl_add_u32 {v(t5)}, {v(vRV)}, 4, {v(t5)}"); I(f"v_add_u32 {v(vRV)}, {v(t5)}, {v(t4)}")
            I(f"v_xor_b32 {v(vRV+1)}, 16, {v(vRV)}"); I(f"v_add_u32 {v(vRV+1)}, 512, {v(vRV+1)}")
            for e in range(1, 8):
                I(f"v_xor_b32 {v(vRV+2*e)}, {32*e}, {v(vRV)}"); I(f"v_xor_b32 {v(vRV+2*e+1)}, {32*e}, {v(vRV+1)}")
            I(f"v_lshl_add_u32 {v(vRT)}, {v(vRT)}, 4, {v(t4)}"); I(f"v_lshl_add_u32 {v(vRT)}, {v(t0)}, 7, {v(vRT)}")
            I(f"v_lshl_add_u32 {v(vRT)}, {v(vC)}, 10, {v(vRT)}")
        def su_role():
            I(f"s_cmp_lg_u32 s{sRole}, 0"); I("s_cbranch_scc1 L_od_setup")
            I(f"s_lshl_b32 s{sT1}, s{sHH}, 3"); I(f"s_add_u32 s{sT1}, s{sT1}, s{sX}")
            I(f"s_cmp_lt_u32 s{sT1}, 27"); I(f"s_cselect_b32 s{sHasG}, 1, 0")
            I(f"s_lshl_b32 s{sT3}, s{sSub}, 2"); I(f"s_add_u32 s{sT3}, s{sT3}, s{sW}"); I(f"s_lshl_b32 s{sT3}, s{sT3}, 12")
            I(f"v_lshl_add_u32 {v(vXG)}, {v(vL)}, 4, s{sT3}")
            I(f"v_cmp_eq_u32 vcc, 0, {v(vC)}"); I(f"v_add_u32 {v(t4)}, 2560, {v(vPub)}"); I(f"s_lshl_b32 s{sT2}, s{sHH}, 2")
            I(f"v_cndmask_b32 {v(vPubC)}, {v(vOob)}, {v(t4)}, vcc")
            I(f"s_add_u32 s{sT2}, s{sT2}, s{sW}"); I(f"s_lshl_b32 s{sT3}, s{sT2}, 7"); I(f"s_lshl_b32 s{sT2}, s{sSub}, 3"); I(f"s_add_u32 s{sT3}, s{sT3}, s{sT2}"); I(f"s_add_u32 s{sT3}, s{sT3}, {MB_S}")
            I(f"v_and_b32 {v(t4)}, 31, {v(vL)}"); I(f"v_cmp_eq_u32 vcc, 31, {v(t4)}")
            I(f"v_lshrrev_b32 {v(t5)}, 5, {v(vL)}"); I(f"v_lshl_add_u32 {v(t3)}, {v(t5)}, 6, s{sT3}")
            I(f"v_cndmask_b32 {v(vPubS)}, {v(vOob)}, {v(t3)}, vcc")
            I(f"s_lshl_b32 s{sT3}, s{sW}, 5"); I(f"v_xor_b32 {v(vRT)}, s{sT3}, {v(vRT)}"); I(f"v_add_u32 {v(vRT+1)}, 0x10000, {v(vRT)}")
            I(f"v_and_b32 {v(t3)}, 7, {v(vL)}"); I(f"s_lshl_b32 s{sT3}, s{sX}, 10"); I(f"v_lshl_add_u32 {v(vFl)}, {v(t3)}, 7, s{sT3}")
            I(f"s_and_b32 s{sT2}, s{sW}, 1"); I(f"s_lshl_b32 s{sT2}, s{sT2}, 6"); I(f"s_lshl_b32 s{sT3}, s{sSub}, 7"); I(f"s_add_u32 s{sT2}, s{sT2}, s{sT3}")
            I(f"s_mul_i32 s{sT2}, s{sT2}, 3456"); I(f"s_lshl_b32 s{sT1}, s{sT1}, 7"); I(f"s_add_u32 s{sT2}, s{sT2}, s{sT1}")
            I(f"s_cmp_lt_u32 s{sW}, 2"); I(f"s_cselect_b32 s{rT}, s{pWG}, s{pWU}"); I(f"s_cselect_b32 s{rT+1}, s{pWG+1}, s{pWU+1}")
            I(f"s_add_u32 s{rT}, s{rT}, s{sT2}"); I(f"s_addc_u32 s{rT+1}, s{rT+1}, 0")
            I(f"s_mov_b32 s{rT+2}, {63*3456+128}")
            I(f"s_mov_b32 s{sInc}, {8*3456}"); I(f"s_movk_i32 s{sT3}, 3456")
            I("L_role_done:")
            I(f"v_lshrrev_b32 {v(t3)}, 3, {v(vL)}"); I(f"v_and_b32 {v(t4)}, 7, {v(vL)}"); I(f"v_and_b32 {v(t5)}, 2, {v(t3)}")
            I(f"v_xor_b32 {v(t4)}, {v(t4)}, {v(t5)}"); I(f"v_mul_u32_u24 {v(t3)}, s{sT3}, {v(t3)}")
            I(f"v_lshl_add_u32 {v(vTo)}, {v(t4)}, 4, {v(t3)}"); I(f"v_xor_b32 {v(t4)}, 4, {v(t4)}"); I(f"v_lshl_add_u32 {v(vTo+1)}, {v(t4)}, 4, {v(t3)}")
            if opt.get('notrail'): I(f"s_mov_b32 s{rT+2}, 0")
            c = Gen(); J = c.I
            J("L_od_setup:")
            J(f"s_cmp_lt_u32 s{sCB}, 10"); J(f"s_cselect_b32 s{sRole}, 1, 2")
            J(f"s_lshl_b32 s{sT2}, s{sX}, 2"); J(f"s_add_u32 s{sT2}, s{sT2}, s{sW}")
            J(f"s_lshl_b32 s{sT3}, s{sW}, 11"); J(f"v_lshrrev_b32 {v(t3)}, 1, {v(vN)}"); J(f"v_lshl_add_u32 {v(t3)}, {v(t3)}, 8, s{sT3}"); J(f"v_add_u32 {v(vOA)}, {v(t3)}, {v(vSp)}")
            J(f"s_lshl_b32 s{sT3}, s{sW}, 7"); J(f"v_lshl_add_u32 {v(vOS)}, {v(vC)}, 5, s{sT3}")
            J(f"s_lshl_b32 s{sT3}, s{sW}, 9"); J(f"v_lshrrev_b32 {v(t3)}, 2, {v(vN)}"); J(f"v_lshl_add_u32 {v(t3)}, {v(t3)}, 7, s{sT3}"); J(f"v_add_u32 {v(vDA)}, {v(t3)}, {v(vSp)}")
            J(f"s_lshl_b32 s{sT3}, s{sW}, 10"); J(f"s_add_u32 s{sT3}, s{sT3}, {RLO}"); J(f"v_lshl_add_u32 {v(t3)}, {v(vC)}, 8, s{sT3}"); J(f"v_lshl_add_u32 {v(vRLw)}, {v(vN)}, 2, {v(t3)}")
            J(f"v_lshlrev_b32 {v(vRLr)}, 4, {v(vL)}"); J(f"v_add_u32 {v(vRLr)}, {RLO}, {v(vRLr)}")
            J(f"s_lshr_b32 s{sT3}, s{sCB}, 1"); J(f"s_lshl_b32 s{sT3}, s{sT3}, 14"); J(f"s_lshl_b32 s{sT1}, s{sX}, 9"); J(f"s_add_u32 s{sT3}, s{sT3}, s{sT1}")
            J(f"s_and_b32 s{sT1}, s{sCB}, 1"); J(f"s_lshl_b32 s{sT1}, s{sT1}, 8"); J(f"s_add_u32 s{sT3}, s{sT3}, s{sT1}")
            J(f"v_lshl_add_u32 {v(t3)}, {v(vC)}, 12, s{sT3}"); J(f"v_lshl_add_u32 {v(vPubO)}, {v(vN)}, 4, {v(t3)}")
            J(f"v_add_u32 {v(vRT)}, s{sRing}, {v(vRT)}")
            for k in (1, 2, 3): J(f"v_xor_b32 {v(vRT+k)}, {32*k}, {v(vRT)}")
            J(f"s_lshl_b32 s{sT1}, s{sW}, 3"); J(f"s_add_u32 s{sT1}, s{sT1}, s{sX}"); J(f"s_cmp_lt_u32 s{sT1}, 27"); J(f"s_cselect_b32 s{sHasG}, 1, 0")
            J(f"s_mul_i32 s{sT2}, s{sT2}, {128*1280}"); J(f"s_lshl_b32 s{sT3}, s{sCB}, 7"); J(f"s_add_u32 s{sT2}, s{sT2}, s{sT3}")
            c.make_srd(rT, pWO, sT2, 127 * 1280 + 128)
            J(f"s_cmp_eq_u32 s{sRole}, 1"); J(f"s_cselect_b32 s{rT+2}, s{rT+2}, 0")
            J(f"s_mov_b32 s{sInc}, {8*1280}"); J(f"s_movk_i32 s{sT3}, 1280")
            J("s_cbranch_scc1 L_role_done")
            J(f"v_cmp_gt_u32 vcc, 32, {v(vL)}")
            J(f"v_and_b32 {v(t3)}, 31, {v(vL)}"); J(f"v_lshlrev_b32 {v(vXG)}, 4, {v(t3)}")
            J(f"v_lshlrev_b32 {v(vXLw)}, 4, {v(vL)}")
            J(f"s_cmp_lt_u32 s{sX}, 3"); J(f"s_cselect_b64 vcc, -1, vcc"); J(f"v_cndmask_b32 {v(vXLr)}, {v(vOob)}, {v(vXLw)}, vcc")
            J(f"v_cmp_gt_u32 vcc, 8, {v(vL)}")
            J(f"s_lshl_b32 s{sT1}, s{sX}, 7"); J(f"v_lshl_add_u32 {v(t3)}, {v(vL)}, 10, s{sT1}")
            J(f"v_cndmask_b32 {v(vFl)}, {v(vOob)}, {v(t3)}, vcc")
            J("s_branch L_role_done")
            self.cold.append([x.text for x in c.a.L])
        def lg0(): I("s_waitcnt lgkmcnt(0)")
        fine = self.stamp if opt.get('fine') else (lambda: None)
        def items(a_, b_):
            for i in range(a_, b_): self.item(i)
            fine()
        extra = [0]
        def wait2(tag):
            k = max(i for i, t in enumerate(self.vm) if t == tag); n = sum(1 for t in self.vm[k + 1:] if t not in ("q0", "q1"))
            if extra[0] == 0: I(f"s_waitcnt vmcnt({n})"); return
            l1 = self.lab("w2")
            I(f"s_cmp_eq_u32 s{sRole}, 1"); I(f"s_waitcnt vmcnt({n+extra[0]})"); I(f"s_cbranch_scc1 {l1}"); I(f"s_waitcnt vmcnt({n})"); I(f"{l1}:")
        def trail(a_, b_):
            l1 = self.lab("tr")
            I(f"s_cmp_lg_u32 s{sRole}, 1"); I(f"s_cbranch_scc1 {l1}")
            sv = list(self.vm)
            for i in range(a_, b_): self.item(i)
            self.vm = sv; extra[0] += b_ - a_
            I(f"{l1}:")
        su_k(); su_const(); items(16, 20); su_att(); items(20, 24); su_att2(); su_v(); items(24, 28); su_role(); items(28, 32)
        QI = (opt.get('qi', 40), opt.get('qi2', 52)); QK = (opt.get('qk', 52), opt.get('qk2', 64))
        kdone = 0
        for st in range(32, 68, 4):
            if st < 64 and st % 8 == 0 and kdone < (st - 32) // 4 + 2:
                self.wait_for(st - 32 + 7); self.k_read(kdone); self.k_read(kdone + 1); kdone += 2; lg0()
            for rl in range(2):
                if st == QK[rl]:
                    if kdone < 8:
                        self.wait_for(31)
                        while kdone < 8: self.k_read(kdone); kdone += 1
                        lg0()
                    sk = self.lab("qks")
                    I(f"s_cmp_{'lg' if rl == 0 else 'eq'}_u32 s{sRole}, 0"); I(f"s_cbranch_scc1 {sk}")
                    self.wait_for(f"q{rl}")
                    self.stamp()
                    self.a_input0()
                    self.qk_softmax()
                    lg0()
                    for grp in self.factor_ops():
                        for x in grp: I(x)
                    lg0()
                    self.stamp()
                    I(f"{sk}:")
                if st == QI[rl]:
                    w0 = self.lab("gi")
                    I(f"s_cmp_{'lg' if rl == 0 else 'eq'}_u32 s{sRole}, 0"); I(f"s_cbranch_scc1 {w0}")
                    I(f"s_cmp_lg_u32 s{sW}, 0"); I(f"s_cbranch_scc1 {w0}")
                    if not opt.get('noq0'): self.g5_issue_data(vQ0)
                    I(f"{w0}:")
                    self.vm.append(f"q{rl}")
            if st < 64: items(st, st + 4)
        if opt.get('noflag'): self.vmop(f"buffer_load_dword {v(vFlagsV)}, {v(vOob)}, {srd(rK)}, 0 offen", "fl")
        else: self.vmop(f"buffer_load_dwordx2 {vr(vFlagsV,2)}, {v(vFa)}, {srd(rGR)}, 0 offen sc1", "fl")
        self.wait_for(39); self.v_read(0)
        self.wait_for(47); self.v_read(1)
        lg0(); trail(64, 68)
        for e in range(8): self.pv(e, 0)
        wait2(55); self.v_read(2); trail(68, 72)
        wait2(59); trail(72, 76)
        wait2("fl")
        fp, fc, fr, fk = (self.lab(x) for x in ("fp", "fc", "fr", "fk"))
        self.left = 76
        self.stamp()
        self.v_read(3)
        I(f"{fc}:")
        I(f"v_cmp_ne_u32 vcc, s{sTag}, {v(vFlagsV+1)}")
        if not opt.get('noflag'): I(f"s_cbranch_vccnz {fr}")
        I(f"{fk}:")
        self.cold.append([f"{fp}:", "s_sleep 8", f"buffer_load_dwordx2 {vr(vFlagsV,2)}, {v(vFa)}, {srd(rGR)}, 0 offen sc1", "s_waitcnt vmcnt(0)", f"s_branch {fc}"])
        self.retry(fr, fp, fk, None)
        I(f"v_cmp_ne_u32 vcc, s{sXcc}, {v(vFlagsV)}"); I("s_cmp_lg_u64 vcc, 0")
        I(f"s_cselect_b32 s{sFast}, 0, 1")
        for e in range(8):
            I(f"s_waitcnt lgkmcnt({min(15, 14-2*e)})")
            self.pv(e, 1)
        for e in range(8): self.o_compact(e)
        I(f"s_add_u32 s{sSt}, s{sTag}, 1")
        I("L_a_end:")
        if opt.get('noend'): self.stamp(); I("s_branch L_end_prof")
        self.a_end()
        self.mark(2)
        self.stamp()
        if self.opt.get('exitA'): I("s_branch L_end_prof")
        I(f"s_cmp_eq_u32 s{sRole}, 1"); I("s_cbranch_scc1 L_od")
        I(f"s_cmp_eq_u32 s{sRole}, 2"); I("s_cbranch_scc1 L_watch")
        self.zero(range(vS, vS + 8))
        I(f"s_cmp_eq_u32 s{sHasG}, 0"); I("s_cbranch_scc1 L_qg_nog")
        I(f"s_cmp_lg_u32 s{sLayer}, 0"); I("s_cbranch_scc1 L_qg_g")
        for i in range(64, 72): self.item(i)
        I("s_waitcnt vmcnt(0)"); I("s_barrier")
        for gu in range(2):
            for kk in range(4):
                for rd in range(2):
                    I(f"ds_read_b64_tr_b16 {vr(WG+16*gu+4*kk+2*rd,2)}, {v(vRT+gu)} offset:{(kk>>1)*32768+(kk&1)*4096+rd*512}")
        I("L_qg_g:")
        self.xg(sMO)
        self.stamp()
        self.gemv(WG)
        self.stamp()
        I(f"s_cmp_lg_u32 s{sW}, 0"); I("s_cbranch_scc1 L_qg_h_done")
        I(f"s_cmp_eq_u32 s{sSub}, 4"); I("s_cbranch_scc1 L_qg_h_done")
        self.h_stage()
        I("L_qg_h_done:")
        self.stamp()
        I(f"s_cmp_lg_u32 s{sLayer}, 0"); I("s_cbranch_scc1 L_end_prof")
        self.zero(range(vS, vS + 8))
        I("L_qg_q:")
        self.xg(sMD)
        self.stamp()
        I(f"s_add_u32 s{sSt}, s{sTag}, 2")
        self.gemv(WQ)
        I("L_next:")
        I(f"s_cmp_lg_u32 s{sLayer}, 0"); I("s_cbranch_scc1 L_end_prof")
        self.stamp()
        I(f"s_mov_b32 s{sLayer}, 1")
        I(f"s_add_u32 s{sSt}, s{sTag}, 2")
        I(f"s_mov_b32 s{sMA}, {MB_A1}"); I(f"s_mov_b32 s{sMAS}, {MB_AS1}"); I(f"s_mov_b32 s{sMO}, {MB_O1}")
        I(f"s_mov_b32 s{sMD}, {MB_D1}"); I(f"s_mov_b32 s{sMH}, {MB_H1}")
        self.zero([vS + 4 * t + k for t in range(8) for k in range(2)])
        self.zero([vO + 4 * t + k for t in range(8) for k in range(2)])
        self.a_input()
        self.mark(4)
        self.stamp()
        self.qk_softmax()
        I(f"s_add_u32 s{sSt}, s{sTag}, 3")
        I("s_waitcnt lgkmcnt(0)")
        fo = self.factor_ops()
        for e in range(8):
            self.pv(e, 0); self.pv(e, 1)
            for x in fo[e]: I(x)
            if e >= 4: self.o_compact(e - 4)
        for e in range(4, 8): self.o_compact(e)
        I("s_branch L_a_end")
        I("L_qg_nog:")
        self.xg(sMO)
        self.x_unpack()
        I(f"s_cmp_eq_u32 s{sLayer}, 0"); I("s_cbranch_scc1 L_qg_q")
        I(f"s_sub_u32 s{sT0}, s{sX}, 4"); I(f"s_cmp_lg_u32 s{sT0}, s{sW}"); I("s_cbranch_scc1 L_end_prof")
        I(f"v_and_b32 {v(vT+8)}, 31, {v(vL)}"); I(f"v_lshrrev_b32 {v(vT+9)}, 5, {v(vL)}")
        I(f"v_lshlrev_b32 {v(vT+8)}, 3, {v(vT+8)}"); I(f"v_lshl_or_b32 {v(vT+8)}, {v(vT+9)}, 2, {v(vT+8)}")
        I(f"s_mul_i32 s{sT2}, s{sW}, 1280"); I(f"s_lshl_b32 s{sT3}, s{sSub}, 8"); I(f"s_add_u32 s{sT2}, s{sT2}, s{sT3}")
        I(f"v_add_u32 {v(vT+8)}, s{sT2}, {v(vT+8)}")
        self.xg(sMD)
        I(f"global_store_dword {v(vT+8)}, {v(vXpk)}, {sp(pOUT)}")
        I(f"v_mov_b32 {v(vT+9)}, s{sSt}"); I(f"v_mov_b32 {v(vT+10)}, {MB_E}"); I("s_mov_b64 exec, 1")
        I(f"s_cmp_lg_u32 s2, 196"); I("s_cbranch_scc1 L_notag")
        I(f"buffer_store_dword {v(vT+9)}, {v(vT+10)}, {srd(rWS)}, 0 offen")
        I("L_notag:")
        I("s_mov_b64 exec, -1")
        self.stamp()
        I("s_branch L_end_prof")
        I("L_od:")
        I(f"s_cmp_lg_u32 s{sLayer}, 0"); I("s_cbranch_scc1 L_od_o")
        for i in range(self.left, 80): self.item(i)
        for kk in range(4):
            I(f"s_waitcnt vmcnt({12-4*kk})")
            for t in range(4):
                for rd in range(2):
                    I(f"ds_read_b64_tr_b16 {vr(WO+16*t+4*kk+2*rd,2)}, {v(vRT+t)} offset:{kk*4096+rd*512}")
        I("s_waitcnt lgkmcnt(0)")
        I("L_od_o:")
        self.stamp()
        self.o_stage()
        self.stamp()
        I(f"s_cmp_lg_u32 s{sLayer}, 0"); I("s_cbranch_scc1 L_od_d")
        I(f"s_lshl_b32 s{sT1}, s{sW}, 3"); I(f"s_add_u32 s{sT1}, s{sT1}, s{sX}"); I(f"s_mul_i32 s{sT1}, s{sT1}, {64*1280}")
        I(f"s_lshl_b32 s{sT3}, s{sCB}, 7"); I(f"s_add_u32 s{sT1}, s{sT1}, s{sT3}")
        self.make_srd(rT, pWD, sT1, 0)
        I(f"s_mul_i32 s{rT+2}, s{sHasG}, {63*1280+128}")
        for i in range(64, 72): self.item(i)
        I("s_waitcnt vmcnt(0)")
        for kk in range(2):
            for t in range(4):
                for rd in range(2):
                    I(f"ds_read_b64_tr_b16 {vr(WD+8*t+4*kk+2*rd,2)}, {v(vRT+t)} offset:{kk*4096+rd*512}")
        I("s_waitcnt lgkmcnt(0)")
        I("L_od_d:")
        self.d_stage()
        self.stamp()
        I("s_branch L_next")
        I("L_watch:")
        I(f"s_cmp_lg_u32 s{sCB}, 10"); I("s_cbranch_scc1 L_next"); I(f"s_cmp_lg_u32 s{sW}, 3"); I("s_cbranch_scc1 L_next")
        I(f"v_mov_b32 {v(vT+1)}, s{sTag}")
        wp, wr, wk = (self.lab(x) for x in ("wp", "wr", "wk"))
        I(f"{wp}:")
        I(f"buffer_load_dwordx2 {vr(vG,2)}, {v(vXG)}, {srd(rGR)}, s{sMAS} offen sc1")
        I("s_waitcnt vmcnt(0)")
        I(f"v_cmp_ne_u32 vcc, s{sTag}, {v(vG+1)}")
        I(f"s_cbranch_vccnz {wr}")
        I(f"{wk}:")
        self.retry(wr, wp, wk, None)
        I(f"buffer_store_dword {v(vT+1)}, {v(vFl)}, {srd(rWS)}, s{sMF} offen sc1")
        I(f"s_add_u32 s{sMF}, s{sMF}, {SZ_F}")
        wp, wr, wk = (self.lab(x) for x in ("wp", "wr", "wk"))
        I(f"{wp}:")
        I(f"buffer_load_dwordx4 {vr(vG,4)}, {v(vXLw)}, {srd(rGR)}, s{sMH} offen sc1")
        I(f"buffer_load_dwordx4 {vr(vG+4,4)}, {v(vXLr)}, {srd(rGR)}, s{sMH} offen offset:1024 sc1")
        I("s_waitcnt vmcnt(0)")
        I(f"v_max_u32 {v(vT)}, {v(vG)}, {v(vG+4)}")
        I(f"v_cmp_eq_u32 vcc, -1, {v(vT)}")
        I(f"s_cbranch_vccnz {wr}")
        I(f"{wk}:")
        self.retry(wr, wp, wk, None)
        I(f"buffer_store_dword {v(vT+1)}, {v(vFl)}, {srd(rWS)}, s{sMF} offen sc1")
        I(f"s_add_u32 s{sMF}, s{sMF}, {SZ_F}")
        I("s_branch L_next")
        I("L_end_prof:")
        if opt.get('spin'):
            I("s_memrealtime s[12:13]"); I("s_waitcnt lgkmcnt(0)"); I("s_sub_u32 s12, s12, s94"); I("s_cmp_lt_u32 s12, 3000"); I("s_cbranch_scc1 L_end_prof")
        if self.prof:
            I(f"s_lshl_b32 s{sT2}, s2, 2"); I(f"s_add_u32 s{sT2}, s{sT2}, s{sW}"); I(f"s_lshl_b32 s{sT2}, s{sT2}, 8"); I(f"s_add_u32 s{sT2}, s{sT2}, {MB_PROF}")
            I(f"v_lshlrev_b32 {v(vT)}, 2, {v(vL)}")
            I(f"buffer_store_dword {v(vStampV)}, {v(vT)}, {srd(rWS)}, s{sT2} offen")
            if self.opt.get('exitA'): I("s_endpgm")
            I(f"s_cmp_lg_u32 s2, 196"); I("s_cbranch_scc1 L_end"); I(f"s_cmp_lg_u32 s{sW}, 0"); I("s_cbranch_scc1 L_end")
            I(f"v_readlane_b32 s{sT0}, {v(vStampV)}, 0"); I(f"v_subrev_u32 {v(vT+1)}, s{sT0}, {v(vStampV)}")
            I(f"global_store_dword {v(vT)}, {v(vT+1)}, {sp(pDBG)} sc1")
        I("L_end:")
        I("s_endpgm")
        for c in self.cold:
            for x in c: I(x)
        I("s_endpgm")
        I("L_codeused:")
        I(".fill (4096 - ((L_codeused - L_pc) & 4095)) / 4, 4, 0xbf810000")
        I("L_codeend:")
        errs = self.a.check_branches()
        assert not errs, "\n".join(errs)
        head = [f"; @launch grid=(256,1,1) block=(256,1,1) lds={LDS_BYTES}",
                "; generated by dev/gen.py (hand-written generator); persistent kernel, one workgroup per CU",
                '.amdgcn_target "amdgcn-amd-amdhsa--gfx950"', ".text", f".globl {NAME}_kernel", ".p2align 8", f".type {NAME}_kernel,@function"]
        tail = ['.section .rodata,"a"', ".p2align 6", f".amdhsa_kernel {NAME}_kernel",
                "  .amdhsa_next_free_vgpr 512", "  .amdhsa_next_free_sgpr 96", "  .amdhsa_accum_offset 256",
                "  .amdhsa_group_segment_fixed_size 0", "  .amdhsa_kernarg_size 96", "  .amdhsa_user_sgpr_count 2",
                "  .amdhsa_user_sgpr_kernarg_segment_ptr 1", "  .amdhsa_system_sgpr_workgroup_id_x 1",
                "  .amdhsa_float_denorm_mode_32 3", ".end_amdhsa_kernel"]
        return "\n".join(head) + "\n" + self.a.text() + "\n".join(tail) + "\n"

if __name__ == "__main__":
    open("k.s", "w").write(Gen(False).build())
    open("k_prof.s", "w").write(Gen(True).build())
    for a in sys.argv[1:]:
        o = {k.split("=")[0]: (int(k.split("=")[1]) if "=" in k else 1) for k in a.split(",")}
        open(f"kx_{a.replace(',', '_').replace('=', '')}.s", "w").write(Gen(not o.get('noprof'), **o).build())
    print("vgprs used", vn[0], "LDS", LDS_BYTES, "WS", WS_USED, "Z2", Z2, "PROF", MB_PROF)
```
